```python
import torch

def _softmax(x, axis=-1):
    return torch.softmax(x, dim=axis)
def _gelu(x):
    return torch.nn.functional.gelu(x, approximate="tanh")
def _silu(x):
    return torch.nn.functional.silu(x)
def _sigmoid(x):
    return torch.sigmoid(x)
def _layernorm(x, axis=-1, eps=1e-5):
    m = x.mean(dim=axis, keepdim=True)
    v = x.var(dim=axis, keepdim=True, unbiased=False)
    return (x - m) / torch.sqrt(v + eps)
def _scatter_add(tgt, idx, src, axis=0):
    return tgt.clone().index_add_(axis, idx, src)
def _segment_sum(src, seg, n):
    out = torch.zeros((n,) + src.shape[1:], dtype=src.dtype)
    return out.index_add_(0, seg, src)
def _pad(x, pw):
    flat = tuple(v for pair in reversed(pw) for v in pair)
    return torch.nn.functional.pad(x, flat)

kernel_name = 'standalone__batchnorm__sampling'

def setup_inputs():

    _w = (lambda a: (lambda t: t.to(torch.bfloat16) if t.is_floating_point() else t)(torch.as_tensor(a)))
    B, S, C = 1024, 8, 1024
    K = 3
    return {
        "x": _w((lambda *s: torch.randn(*s, dtype=torch.bfloat16) * 0.05)(B, S, C)),
        "w": _w((lambda *s: torch.randn(*s, dtype=torch.bfloat16) * 0.05)(K, C, C) * (1.0 / (K * C) ** 0.5)),
        "mean": _w((lambda *s: torch.randn(*s, dtype=torch.bfloat16) * 0.05)(C) * 0.1),
        "var": _w(torch.abs((lambda *s: torch.randn(*s, dtype=torch.bfloat16) * 0.05)(C)) + 0.5),
        "g": _w((lambda *s: torch.randn(*s, dtype=torch.bfloat16) * 0.05)(C) + 1.0),
        "b": _w((lambda *s: torch.randn(*s, dtype=torch.bfloat16) * 0.05)(C) * 0.1),
    }

def reference(x, w, mean, var, g, b):
    K = 3
    P = K // 2
    S = x.shape[1]
    xp = _pad(x, ((0, 0), (P, P), (0, 0)))
    y = sum(torch.einsum('bsc,cd->bsd', xp[:, k:k + S, :], w[k]) for k in range(K))
    inv_std = 1.0 / torch.sqrt(var + 1e-5)
    y = (y - mean) * (g * inv_std) + b
    return _silu(y)
```

```python
import sys, argparse

HEADER = """; Kernarg layout for this problem (72 bytes, ptrs only, base s[0:1]):
"""
KN = "standalone__batchnorm__sampling_kernel"

SLOT = 40960
WREG = 10240

class G:
    def __init__(self):
        self.lines = []
    def __call__(self, s):
        self.lines.append("    " + s)
    def label(self, s):
        self.lines.append(s + ":")
    def raw(self, s):
        self.lines.append(s)
    def text(self):
        return "\n".join(self.lines) + "\n"

def vr(b, n):
    return f"v[{b}:{b+n-1}]" if n > 1 else f"v{b}"

def gen(o):
    g = G()
    S_MODE = o.mode == "S"
    nthreads = 512 if S_MODE else 256
    shape = o.shape
    L = o.lead
    NXB = 8
    V_XD, V_WD = 1, 2
    V_XA = [[3, 4], [5, 6]]
    V_WA = [[7, 8], [9, 10]]
    V_OUT = 11
    V_T = 12
    V_SC, V_SH = 16, 32
    V_XB = 48
    V_WB = [80, 104]
    V_ACC = 128
    NBN = 8 if shape == 16 else 16
    S_XS, S_WS, S_OS = 8, 12, 16
    S_PS = 20
    S_WAVE, S_B0, S_N0 = 24, 25, 26
    S_M = [27, 28]
    S_DELTA, S_CNT = 29, 30
    S_XO1 = 31
    S_WO = [32, 33, 34, 35, 36, 37]
    S_XN, S_WN = 38, 39
    S_T = 40
    S_STAMP = 60

    def acc(sp, bg, d):
        if shape == 16:
            return V_ACC + ((sp * 2 + bg) * 2 + d) * 4
        return V_ACC + sp * 16
    def wfrag(p, t, d):
        return V_WB[p] + (t * 2 + d) * 4

    g.raw(HEADER + f"; @launch grid=(256,1,1) block=({nthreads},1,1) lds=163840")
    g.raw('.amdgcn_target "amdgcn-amd-amdhsa--gfx950"')
    g.raw(".text")
    g.raw(f".globl {KN}")
    g.raw(".p2align 8")
    g.raw(f".type {KN},@function")
    g.label(KN)
    g("s_cmp_ge_u32 s2, 256")
    g("s_cbranch_scc1 L_end")
    if o.stamp:
        g(f"s_memtime s[{S_STAMP}:{S_STAMP+1}]")
        g(f"s_memrealtime s[{S_STAMP+2}:{S_STAMP+3}]")
    g("s_load_dwordx4 s[4:7], s[0:1], 0")
    g("s_load_dwordx8 s[44:51], s[0:1], 16")
    g("s_load_dwordx2 s[52:53], s[0:1], 48")
    if o.stamp:
        g("s_load_dwordx2 s[54:55], s[0:1], 64")
    g("s_and_b32 s3, s2, 7")
    g(f"s_lshr_b32 s{S_T}, s2, 3")
    g(f"s_lshr_b32 s{S_B0}, s3, 1")
    g(f"s_lshl_b32 s{S_B0}, s{S_B0}, 3")
    g(f"s_lshr_b32 s{S_T+1}, s{S_T}, 2")
    g(f"s_add_u32 s{S_B0}, s{S_B0}, s{S_T+1}")
    g(f"s_lshl_b32 s{S_B0}, s{S_B0}, 19")
    g(f"s_and_b32 s{S_N0}, s3, 1")
    g(f"s_lshl_b32 s{S_N0}, s{S_N0}, 2")
    g(f"s_and_b32 s{S_T+1}, s{S_T}, 3")
    g(f"s_add_u32 s{S_N0}, s{S_N0}, s{S_T+1}")
    g(f"s_lshl_b32 s{S_N0}, s{S_N0}, 8")
    g(f"v_lshrrev_b32 v{V_T}, 6, v0")
    g("v_and_b32 v0, 63, v0")
    g(f"v_readfirstlane_b32 s{S_WAVE}, v{V_T}")
    g(f"v_lshrrev_b32 v{V_T}, 4, v0")
    g(f"v_sub_u32 v{V_T+1}, 0, v{V_T}")
    g(f"v_xor_b32 v{V_T+1}, v{V_T+1}, v0")
    g(f"v_and_b32 v{V_T+1}, 3, v{V_T+1}")
    g(f"v_lshlrev_b32 v{V_T+1}, 4, v{V_T+1}")
    g(f"v_lshrrev_b32 v{V_T+2}, 2, v0")
    g(f"v_lshl_add_u32 v{V_XD}, v{V_T+2}, 14, v{V_T+1}")
    g(f"s_and_b32 s{S_T}, s{S_WAVE}, 3")
    g(f"s_lshl_b32 s{S_T+1}, s{S_T}, 12")
    g(f"v_add_u32 v{V_XD}, s{S_T+1}, v{V_XD}")
    g(f"s_and_b32 s{S_T+2}, s{S_T}, 1")
    g(f"s_lshl_b32 s{S_T+2}, s{S_T+2}, 1")
    g(f"v_lshl_add_u32 v{V_T+1}, v{V_T}, 2, s{S_T+2}")
    g(f"v_xor_b32 v{V_T+1}, v{V_T+1}, v0")
    g(f"v_and_b32 v{V_T+1}, 15, v{V_T+1}")
    g(f"v_lshlrev_b32 v{V_T+1}, 4, v{V_T+1}")
    g(f"v_lshl_add_u32 v{V_WD}, v{V_T}, 11, v{V_T+1}")
    g(f"s_lshl_b32 s{S_T+1}, s{S_T}, 14")
    g(f"v_add_u32 v{V_WD}, s{S_T+1}, v{V_WD}")
    g(f"s_mov_b32 s{S_XO1}, 261120")
    for j in range(6):
        t, qq = j >> 1, j & 1
        io = (j % 4) * 1024
        g(f"s_mov_b32 s{S_WO[j]}, {t * 2097152 + qq * 8192 - io}")
    g(f"s_mul_i32 s{S_M[1]}, s{S_T}, {WREG}")
    g(f"s_mov_b32 s{S_XS+3}, 0x20000")
    g(f"s_mov_b32 s{S_WS+3}, 0x20000")
    g(f"s_mov_b32 s{S_OS+3}, 0x20000")
    g(f"s_mov_b32 s{S_PS+3}, 0x20000")
    g(f"s_mov_b32 s{S_PS+2}, 2048")
    g(f"s_sub_u32 s{S_XN}, 16777216, s{S_B0}")
    g(f"s_sub_u32 s{S_WN}, 6291456, s{S_N0}")
    g("s_waitcnt lgkmcnt(0)")
    g(f"s_add_u32 s{S_XS}, s4, s{S_B0}")
    g(f"s_addc_u32 s{S_XS+1}, s5, 0")
    g(f"s_mov_b32 s{S_XS+2}, s{S_XN}")
    g(f"s_add_u32 s{S_WS}, s6, s{S_N0}")
    g(f"s_addc_u32 s{S_WS+1}, s7, 0")
    g(f"s_mov_b32 s{S_WS+2}, s{S_WN}")

    def dma_ops(m0reg):
        ops = []
        xs = f"s[{S_XS}:{S_XS+3}]"; ws = f"s[{S_WS}:{S_WS+3}]"
        def ld(v, srd, so, off):
            offs = f" offset:{off}" if off else ""
            return f"buffer_load_dwordx4 v{v}, {srd}, {so} offen{offs} lds"
        wl = [ld(V_WD, ws, f"s{S_WO[j]}", (j % 4) * 1024) for j in range(6)]
        xl = [ld(V_XD, xs, "0" if (i & 1) == 0 else f"s{S_XO1}", i * 1024) for i in range(4)]
        ops.append((f"s_add_u32 m0, s{m0reg}, 4096", wl[0]))
        ops += [(None, wl[1]), (None, wl[2]), (None, wl[3])]
        ops.append((f"s_add_u32 m0, s{m0reg}, 8192", wl[4]))
        ops.append((None, wl[5]))
        ops.append((f"s_mov_b32 m0, s{m0reg}", xl[0]))
        ops += [(None, xl[1]), (None, xl[2]), (None, xl[3])]
        return ops
    def srd_adv():
        return [f"s_add_u32 s{S_XS}, s{S_XS}, 64", f"s_addc_u32 s{S_XS+1}, s{S_XS+1}, 0",
                f"s_add_u32 s{S_WS}, s{S_WS}, 65536", f"s_addc_u32 s{S_WS+1}, s{S_WS+1}, 0"]
    def emit_dma_burst(m0reg):
        for m, d in dma_ops(m0reg):
            if m:
                g(m); g("s_nop 0")
            g(d)
        for s in srd_adv(): g(s)

    NPRE = 4 if S_MODE else 3
    if S_MODE:
        g(f"s_cmp_lt_u32 s{S_WAVE}, 4")
        g("s_cbranch_scc1 L_consumer")
        for st in range(4):
            emit_dma_burst(S_M[1])
            g(f"s_add_u32 s{S_M[1]}, s{S_M[1]}, {SLOT}")
        g(f"s_sub_u32 s{S_M[1]}, s{S_M[1]}, {4*SLOT}")
        g(f"s_add_u32 s{S_M[0]}, s{S_M[1]}, {4*SLOT}")
        g("s_waitcnt vmcnt(30)")
        g("s_barrier")
        g(f"s_mov_b32 s{S_CNT}, 4")
        g.label("L_ld_loop")
        g("s_waitcnt vmcnt(20)")
        g("s_barrier")
        g(f"s_cmp_lt_u32 s{S_CNT}, 32")
        g(f"s_cselect_b32 s{S_XS+2}, s{S_XN}, 0")
        g(f"s_cselect_b32 s{S_WS+2}, s{S_WN}, 0")
        emit_dma_burst(S_M[1])
        g(f"s_add_u32 s{S_M[1]}, s{S_M[1]}, {SLOT}")
        g(f"s_cmp_eq_u32 s{S_M[1]}, s{S_M[0]}")
        g(f"s_cselect_b32 s{S_T}, {4*SLOT}, 0")
        g(f"s_sub_u32 s{S_M[1]}, s{S_M[1]}, s{S_T}")
        g(f"s_add_u32 s{S_CNT}, s{S_CNT}, 1")
        g(f"s_cmp_lt_u32 s{S_CNT}, 36")
        g("s_cbranch_scc1 L_ld_loop")
        g("s_endpgm")
        g.label("L_consumer")

    if shape == 16:
        g(f"v_lshrrev_b32 v{V_T}, 4, v0")
        g(f"v_lshlrev_b32 v{V_T}, 3, v{V_T}")
    else:
        g(f"v_lshrrev_b32 v{V_T}, 5, v0")
        g(f"v_lshlrev_b32 v{V_T}, 4, v{V_T}")
    g(f"s_lshl_b32 s{S_T+1}, s{S_T}, 6")
    g(f"s_add_u32 s{S_T+1}, s{S_T+1}, s{S_N0}")
    g(f"v_add_u32 v{V_T}, s{S_T+1}, v{V_T}")
    V_RAW = V_XB
    nraw = NBN // 2
    npl = 0
    for pi in range(4):
        g(f"s_mov_b32 s{S_PS}, s{44+2*pi}")
        g(f"s_mov_b32 s{S_PS+1}, s{45+2*pi}")
        for d in range(2):
            if shape == 16:
                g(f"buffer_load_dwordx2 {vr(V_RAW+pi*nraw+2*d,2)}, v{V_T}, s[{S_PS}:{S_PS+3}], 0 offen offset:{32*d}")
            else:
                g(f"buffer_load_dwordx4 {vr(V_RAW+pi*nraw+4*d,4)}, v{V_T}, s[{S_PS}:{S_PS+3}], 0 offen offset:{32*d}")
            npl += 1
    if not S_MODE:
        for st in range(3):
            emit_dma_burst(S_M[1])
            g(f"s_add_u32 s{S_M[1]}, s{S_M[1]}, {SLOT}")
        g(f"s_mov_b32 s{S_M[0]}, s{S_M[1]}")
        g(f"s_sub_u32 s{S_M[1]}, s{S_M[1]}, {3*SLOT}")
    if shape == 16:
        g(f"v_and_b32 v{V_T}, 15, v0")
        g(f"v_lshrrev_b32 v{V_T+1}, 2, v{V_T}")
        g(f"v_sub_u32 v{V_T+1}, 0, v{V_T+1}")
        g(f"v_lshrrev_b32 v{V_T+2}, 4, v0")
        g(f"v_xor_b32 v{V_T+1}, v{V_T+1}, v{V_T+2}")
        g(f"v_and_b32 v{V_T+1}, 3, v{V_T+1}")
        g(f"v_lshlrev_b32 v{V_T+1}, 4, v{V_T+1}")
        g(f"v_lshl_add_u32 v{V_XA[0][0]}, v{V_T}, 6, v{V_T+1}")
        g(f"v_add_u32 v{V_XA[1][0]}, {SLOT}, v{V_XA[0][0]}")
        g(f"v_bfe_u32 v{V_T}, v0, 2, 2")
        g(f"v_xor_b32 v{V_T+1}, s{S_T}, v{V_T}")
        g(f"v_lshlrev_b32 v{V_T+1}, 6, v{V_T+1}")
        g(f"v_lshl_add_u32 v{V_T+1}, v{V_T}, 8, v{V_T+1}")
        g(f"v_mul_u32_u24 v{V_T+3}, {WREG}, v{V_T+2}")
        g(f"v_add_u32 v{V_T+1}, v{V_T+1}, v{V_T+3}")
        g(f"v_and_b32 v{V_T+2}, 1, v{V_T+2}")
        g(f"v_lshl_add_u32 v{V_T+1}, v{V_T+2}, 5, v{V_T+1}")
        g(f"v_and_b32 v{V_T+2}, 3, v0")
        g(f"v_lshl_add_u32 v{V_T+1}, v{V_T+2}, 3, v{V_T+1}")
        g(f"v_add_u32 v{V_WA[0][0]}, 4096, v{V_T+1}")
        g(f"v_xor_b32 v{V_WA[0][1]}, 32, v{V_WA[0][0]}")
        g(f"v_add_u32 v{V_WA[1][0]}, {SLOT}, v{V_WA[0][0]}")
        g(f"v_add_u32 v{V_WA[1][1]}, {SLOT}, v{V_WA[0][1]}")
        addr_regs = [[V_XA[p][0], V_WA[p][0], V_WA[p][1]] for p in range(2)]
    else:
        g(f"v_and_b32 v{V_T}, 15, v0")
        g(f"v_lshrrev_b32 v{V_T+1}, 2, v{V_T}")
        g(f"v_sub_u32 v{V_T+1}, 0, v{V_T+1}")
        g(f"v_lshrrev_b32 v{V_T+2}, 5, v0")
        g(f"v_xor_b32 v{V_T+1}, v{V_T+1}, v{V_T+2}")
        g(f"v_and_b32 v{V_T+1}, 3, v{V_T+1}")
        g(f"v_lshlrev_b32 v{V_T+1}, 4, v{V_T+1}")
        g(f"v_lshl_add_u32 v{V_T+1}, v{V_T}, 6, v{V_T+1}")
        g(f"v_bfe_u32 v{V_T+3}, v0, 4, 1")
        g(f"v_lshl_add_u32 v{V_XA[0][0]}, v{V_T+3}, 10, v{V_T+1}")
        g(f"v_xor_b32 v{V_XA[0][1]}, 32, v{V_XA[0][0]}")
        g(f"v_add_u32 v{V_XA[1][0]}, {SLOT}, v{V_XA[0][0]}")
        g(f"v_add_u32 v{V_XA[1][1]}, {SLOT}, v{V_XA[0][1]}")
        g(f"v_bfe_u32 v{V_T}, v0, 2, 2")
        g(f"v_xor_b32 v{V_T+1}, s{S_T}, v{V_T}")
        g(f"v_lshlrev_b32 v{V_T+1}, 6, v{V_T+1}")
        g(f"v_lshl_add_u32 v{V_T+1}, v{V_T}, 8, v{V_T+1}")
        g(f"v_mul_u32_u24 v{V_T}, {WREG}, v{V_T+2}")
        g(f"v_add_u32 v{V_T+1}, v{V_T+1}, v{V_T}")
        g(f"v_xor_b32 v{V_T}, v{V_T+2}, v{V_T+3}")
        g(f"v_lshl_add_u32 v{V_T+1}, v{V_T}, 5, v{V_T+1}")
        g(f"v_and_b32 v{V_T}, 1, v0")
        g(f"v_lshl_add_u32 v{V_T+1}, v{V_T}, 4, v{V_T+1}")
        g(f"v_bfe_u32 v{V_T}, v0, 1, 1")
        g(f"v_lshl_add_u32 v{V_T+1}, v{V_T}, 3, v{V_T+1}")
        g(f"v_add_u32 v{V_WA[0][0]}, 4096, v{V_T+1}")
        g(f"v_add_u32 v{V_WA[1][0]}, {SLOT}, v{V_WA[0][0]}")
        addr_regs = [[V_XA[p][0], V_XA[p][1], V_WA[p][0]] for p in range(2)]
    g(f"s_add_u32 s{S_T+1}, s{S_B0}, s{S_N0}")
    g(f"s_add_u32 s{S_OS}, s52, s{S_T+1}")
    g(f"s_addc_u32 s{S_OS+1}, s53, 0")
    g(f"s_sub_u32 s{S_OS+2}, 16777216, s{S_T+1}")
    g(f"v_and_b32 v{V_T}, 15, v0")
    g(f"v_lshlrev_b32 v{V_T}, 14, v{V_T}")
    g(f"v_bfe_u32 v{V_T+1}, v0, 4, 1")
    g(f"v_lshl_add_u32 v{V_T}, v{V_T+1}, 5, v{V_T}")
    g(f"v_lshrrev_b32 v{V_T+1}, 5, v0")
    g(f"v_lshl_add_u32 v{V_T}, v{V_T+1}, 4, v{V_T}")
    g(f"s_lshl_b32 s{S_T+1}, s{S_T}, 6")
    g(f"v_add_u32 v{V_OUT}, s{S_T+1}, v{V_T}")
    for i in range(128):
        g(f"v_mov_b32 v{V_ACC+i}, 0")
    g(f"s_waitcnt vmcnt({0 if S_MODE else 30})")
    M_, V_, G_, B_ = (V_RAW + i * nraw for i in range(4))
    TA, TB = V_WB[1], V_WB[1] + 1
    g(f"s_mov_b32 s{S_T+1}, 0x3727c5ac")
    def unpack(dst, src, hi):
        if hi: g(f"v_and_b32 v{dst}, 0xffff0000, v{src}")
        else:  g(f"v_lshlrev_b32 v{dst}, 16, v{src}")
    for k in range(nraw):
        lo, hi = V_SC + 2 * k, V_SC + 2 * k + 1
        unpack(lo, V_ + k, 0); unpack(hi, V_ + k, 1)
        g(f"v_add_f32 v{lo}, s{S_T+1}, v{lo}")
        g(f"v_add_f32 v{hi}, s{S_T+1}, v{hi}")
        g(f"v_cvt_pk_bf16_f32 v{TA}, v{lo}, v{hi}")
        unpack(lo, TA, 0); unpack(hi, TA, 1)
        g(f"v_sqrt_f32 v{lo}, v{lo}")
        g(f"v_sqrt_f32 v{hi}, v{hi}")
        g("s_nop 0")
        g(f"v_cvt_pk_bf16_f32 v{TA}, v{lo}, v{hi}")
        unpack(lo, TA, 0); unpack(hi, TA, 1)
        g(f"v_rcp_f32 v{lo}, v{lo}")
        g(f"v_rcp_f32 v{hi}, v{hi}")
        g("s_nop 0")
        g(f"v_cvt_pk_bf16_f32 v{TA}, v{lo}, v{hi}")
        unpack(lo, TA, 0); unpack(hi, TA, 1)
        unpack(TA, G_ + k, 0); unpack(TB, G_ + k, 1)
        g(f"v_mul_f32 v{lo}, v{lo}, v{TA}")
        g(f"v_mul_f32 v{hi}, v{hi}, v{TB}")
        g(f"v_cvt_pk_bf16_f32 v{TA}, v{lo}, v{hi}")
        unpack(lo, TA, 0); unpack(hi, TA, 1)
        slo, shi = V_SH + 2 * k, V_SH + 2 * k + 1
        unpack(slo, B_ + k, 0); unpack(shi, B_ + k, 1)
        unpack(TA, M_ + k, 0); unpack(TB, M_ + k, 1)
        g(f"v_fma_f32 v{slo}, -v{TA}, v{lo}, v{slo}")
        g(f"v_fma_f32 v{shi}, -v{TB}, v{hi}, v{shi}")

    def xread(p, f):
        s, q = f >> 1, f & 1
        buf = V_XB + (f % NXB) * 4
        if shape == 16:
            off = (s >> 1) * WREG + (2 * (s & 1) + q) * 1024
            return f"ds_read_b128 {vr(buf,4)}, v{V_XA[p][0]} offset:{off}"
        off = (s >> 1) * WREG + 2 * (s & 1) * 1024
        return f"ds_read_b128 {vr(buf,4)}, v{V_XA[p][q]} offset:{off}"
    def wread(p, t, d, h):
        dst = wfrag(p, t, d) + 2 * h
        if shape == 16:
            return f"ds_read_b64_tr_b16 {vr(dst,2)}, v{V_WA[p][d]} offset:{t*2048 + h*1024}"
        return f"ds_read_b64_tr_b16 {vr(dst,2)}, v{V_WA[p][0]} offset:{d*2*WREG + t*2048 + h*1024}"
    def group_mfmas(p, f):
        s, q = f >> 1, f & 1
        buf = V_XB + (f % NXB) * 4
        out = []
        for t in range(3):
            sp = s - t + 1
            if not 0 <= sp <= 7: continue
            if shape == 16:
                for d in range(2):
                    a = acc(sp, q, d)
                    out.append((f"v_mfma_f32_16x16x32_bf16 {vr(a,4)}, {vr(wfrag(p,t,d),4)}, {vr(buf,4)}, {vr(a,4)}",
                                [("x", f), ("w", t, d, 0), ("w", t, d, 1)]))
            else:
                a = acc(sp, 0, 0)
                out.append((f"v_mfma_f32_32x32x16_bf16 {vr(a,16)}, {vr(wfrag(p,t,q),4)}, {vr(buf,4)}, {vr(a,16)}",
                            [("x", f), ("w", t, q, 0), ("w", t, q, 1)]))
        return out
    if shape == 16:
        worder = [(t, d, h) for t in range(3) for d in range(2) for h in range(2)]
    else:
        worder = [(t, d, h) for d in range(2) for t in range(2) for h in range(2)] + \
                 [(2, d, h) for d in range(2) for h in range(2)]

    def stage_stream(p):
        items = []
        groups = [group_mfmas(p, f) for f in range(16)]
        nm = sum(len(x) for x in groups)
        fill = [[] for _ in range(nm)]
        start = [sum(len(x) for x in groups[:f]) for f in range(17)]
        fb = 16 - L
        for f in range(16):
            if f + L < 16:
                fill[start[f]].append(("l", xread(p, f + L), ("x", f + L, 0)))
        ib = start[fb + 1] - 1
        fill[ib].append(("bar",))
        fill[ib].append(("l", xread(1 - p, 0), ("x", 0, 1)))
        taken = set()
        for f in range(fb + 1, 16):
            fill[start[f]].append(("l", xread(1 - p, f + L - 16), ("x", f + L - 16, 1)))
            taken.add(start[f])
        free = [i for i in range(ib + 1, nm) if i not in taken]
        per = o.wper
        k = 0
        for w_ in worder:
            i = free[min(k // per, len(free) - 1)]
            fill[i].append(("l", wread(1 - p, *w_), ("w",) + w_ + (1,)))
            k += 1
        irot = start[15 - L] + 1
        for j, r in enumerate(addr_regs[p]):
            fill[irot + j].append(("i", f"v_add_u32 v{r}, s{S_DELTA}, v{r}"))
        if not S_MODE:
            ops = dma_ops(S_M[p])
            i0 = o.dma0
            step = o.dmastep
            fill[0].append(("i", f"s_cmp_lt_u32 s{S_CNT}, {29 - p}"))
            fill[0].append(("i", f"s_cselect_b32 s{S_XS+2}, s{S_XN}, 0"))
            fill[1].append(("i", f"s_cselect_b32 s{S_WS+2}, s{S_WN}, 0"))
            for j, (m, d) in enumerate(ops):
                i = i0 + j * step
                assert i < ib, (i, ib)
                if m: fill[i - 1].append(("i", m))
                fill[i].append(("i", d))
            il = i0 + (len(ops) - 1) * step
            for j, s_ in enumerate(srd_adv()):
                fill[il + 1 + j // 2].append(("i", s_))
            fill[il + 3].append(("i", f"s_{'sub' if p == 0 else 'add'}_u32 s{S_M[p]}, s{S_M[p]}, s{S_DELTA}"))
        if p == 1:
            fill[nm - 4].append(("i", f"s_sub_u32 s{S_DELTA}, 0, s{S_DELTA}"))
            fill[nm - 3].append(("i", f"s_add_u32 s{S_CNT}, s{S_CNT}, 2"))
            fill[nm - 2].append(("i", f"s_cmp_lt_u32 s{S_CNT}, 32"))
        i = 0
        for f in range(16):
            for (txt, needs) in groups[f]:
                items.append(("m", txt, needs))
                items += fill[i]
                i += 1
        return items

    streams = [stage_stream(0), stage_stream(1)]
    def place_waits():
        seq = []
        done = -1
        out = None
        for it in range(3):
            cur = []
            for p in range(2):
                st = 2 * it + p
                for item in streams[p]:
                    if item[0] == "m":
                        need = -1
                        for n_ in item[2]:
                            key = n_ + (st,)
                            idx = [i for i, t_ in enumerate(seq) if t_ == key]
                            if idx: need = max(need, idx[-1])
                            else: assert st == 0, key
                        if need > done:
                            cnt = len(seq) - 1 - need
                            cnt = min(cnt, 15)
                            cur.append(f"s_waitcnt lgkmcnt({cnt})")
                            done = len(seq) - 1 - cnt
                        cur.append(item[1])
                    elif item[0] == "l":
                        tag = item[2]
                        seq.append(tag[:-1] + (st + tag[-1],))
                        cur.append(item[1])
                    elif item[0] == "bar":
                        cur.append("s_waitcnt lgkmcnt(0)" if S_MODE else "s_waitcnt vmcnt(20) lgkmcnt(0)")
                        cur.append("s_barrier")
                        done = len(seq) - 1
                    else:
                        cur.append(item[1])
            if it == 2: assert cur == out
            out = cur
        return out
    body = place_waits()

    if not S_MODE:
        g("s_waitcnt vmcnt(20)")
    g("s_barrier")
    if o.stamp:
        g(f"s_memtime s[{S_STAMP+4}:{S_STAMP+5}]")
        g("s_waitcnt lgkmcnt(0)")
    for w_ in worder: g(wread(0, *w_))
    for f in range(L): g(xread(0, f))
    g(f"s_mov_b32 s{S_DELTA}, {2*SLOT}")
    g(f"s_mov_b32 s{S_CNT}, 0")
    g("s_waitcnt lgkmcnt(0)")
    g.raw(".p2align 6")
    g.label("L_loop")
    for s_ in body: g(s_)
    g("s_cbranch_scc1 L_loop")
    if o.stamp:
        g(f"s_memtime s[{S_STAMP+6}:{S_STAMP+7}]")
    g("s_nop 15")
    NL2E = "0xbfb8aa3b"
    g(f"s_mov_b32 s{S_T+2}, {NL2E}")
    P0 = V_XB
    def act(a, k, t):
        return
    units = []
    if shape == 16:
        for sp in range(8):
            for bg in range(2):
                regs = [(acc(sp, bg, d) + j, d * 4 + j) for d in range(2) for j in range(4)]
                units.append((regs, (bg * 128 + sp) * 2048))
    else:
        for sp in range(8):
            regs = [(acc(sp, 0, 0) + i, i) for i in range(16)]
            units.append((regs, sp * 2048))
    ui = 0
    for regs, soff in units:
        n = len(regs)
        E = V_WB[0] + (ui % 2) * 16
        P = V_XB + (ui % 4) * 8
        for (a, k) in regs:
            g(f"v_fma_f32 v{a}, v{a}, v{V_SC+k}, v{V_SH+k}")
        for i, (a, k) in enumerate(regs):
            g(f"v_mul_f32 v{E+i}, s{S_T+2}, v{a}")
        for i in range(n):
            g(f"v_exp_f32 v{E+i}, v{E+i}")
        for i in range(n):
            g(f"v_add_f32 v{E+i}, 1.0, v{E+i}")
        for i in range(n):
            g(f"v_rcp_f32 v{E+i}, v{E+i}")
        for i, (a, k) in enumerate(regs):
            g(f"v_mul_f32 v{a}, v{a}, v{E+i}")
        if shape == 16:
            for i in range(4):
                g(f"v_cvt_pk_bf16_f32 v{P+i}, v{regs[2*i][0]}, v{regs[2*i+1][0]}")
            g(f"s_mov_b32 s{S_T+3}, {soff}")
            g("s_nop 0")
            g(f"v_permlane16_swap_b32 v{P}, v{P+2}")
            g(f"v_permlane16_swap_b32 v{P+1}, v{P+3}")
            g(f"buffer_store_dwordx4 {vr(P,4)}, v{V_OUT}, s[{S_OS}:{S_OS+3}], s{S_T+3} offen{o.stflags}")
        else:
            for i in range(8):
                g(f"v_cvt_pk_bf16_f32 v{P+i}, v{regs[2*i][0]}, v{regs[2*i+1][0]}")
            g(f"s_mov_b32 s{S_T+3}, {soff}")
            g(f"s_mov_b32 s{S_T+4}, {soff + 128*2048}")
            for i in range(4):
                g(f"v_permlane16_swap_b32 v{P+i}, v{P+4+i}")
            g(f"buffer_store_dwordx4 {vr(P,4)}, v{V_OUT}, s[{S_OS}:{S_OS+3}], s{S_T+3} offen{o.stflags}")
            g(f"buffer_store_dwordx4 {vr(P+4,4)}, v{V_OUT}, s[{S_OS}:{S_OS+3}], s{S_T+4} offen{o.stflags}")
        ui += 1
    if o.stamp:
        g(f"s_memtime s[{S_STAMP+8}:{S_STAMP+9}]")
        g("s_waitcnt vmcnt(0)")
        g(f"s_memtime s[{S_STAMP+10}:{S_STAMP+11}]")
        g(f"s_memrealtime s[{S_STAMP+12}:{S_STAMP+13}]")
        g("s_waitcnt lgkmcnt(0)")
        g(f"s_lshl_b32 s{S_T+1}, s2, 2")
        g(f"s_add_u32 s{S_T+1}, s{S_T+1}, s{S_T}")
        g(f"s_lshl_b32 s{S_T+1}, s{S_T+1}, 6")
        g(f"s_mov_b32 s{S_PS}, s54")
        g(f"s_mov_b32 s{S_PS+1}, s55")
        g(f"s_mov_b32 s{S_PS+2}, 0x100000")
        g(f"v_mov_b32 v{V_T}, s{S_T+1}")
        for i in range(14):
            g(f"v_mov_b32 v{V_WB[0]+i}, s{S_STAMP+i}")
        g(f"s_getreg_b32 s{S_T+1}, hwreg(HW_REG_XCC_ID)")
        g(f"v_mov_b32 v{V_WB[0]+14}, s{S_T+1}")
        g(f"s_getreg_b32 s{S_T+1}, hwreg(HW_REG_HW_ID)")
        g(f"v_mov_b32 v{V_WB[0]+15}, s{S_T+1}")
        g("s_mov_b64 exec, 1")
        for i in range(4):
            g(f"buffer_store_dwordx4 {vr(V_WB[0]+4*i,4)}, v{V_T}, s[{S_PS}:{S_PS+3}], 0 offen offset:{16*i}")
    g.label("L_end")
    g("s_endpgm")
    g.raw('.section .rodata,"a"')
    g.raw(".p2align 6")
    g.raw(f".amdhsa_kernel {KN}")
    g.raw("  .amdhsa_next_free_vgpr 256")
    g.raw("  .amdhsa_next_free_sgpr 96")
    g.raw("  .amdhsa_accum_offset 256")
    g.raw("  .amdhsa_group_segment_fixed_size 0")
    g.raw("  .amdhsa_kernarg_size 72")
    g.raw("  .amdhsa_user_sgpr_count 2")
    g.raw("  .amdhsa_user_sgpr_kernarg_segment_ptr 1")
    g.raw("  .amdhsa_system_sgpr_workgroup_id_x 1")
    g.raw(".end_amdhsa_kernel")
    return g.text()

if __name__ == "__main__":
    ap = argparse.ArgumentParser()
    ap.add_argument("--mode", default="U")
    ap.add_argument("--shape", type=int, default=16)
    ap.add_argument("--lead", type=int, default=6)
    ap.add_argument("--wper", type=int, default=1)
    ap.add_argument("--dma0", type=int, default=3)
    ap.add_argument("--dmastep", type=int, default=5)
    ap.add_argument("--stflags", default="")
    ap.add_argument("--stamp", action="store_true")
    ap.add_argument("-o", default="-")
    o = ap.parse_args()
    if o.stflags: o.stflags = " " + o.stflags
    t = gen(o)
    if o.o == "-": sys.stdout.write(t)
    else: open(o.o, "w").write(t)
```

```python
import sys, argparse

HEADER = """; Kernarg layout for this problem (72 bytes, ptrs only, base s[0:1]):
"""
KN = "standalone__batchnorm__sampling_kernel"

SLOT = 40960
WREG = 10240

class G:
    def __init__(self):
        self.lines = []
    def __call__(self, s):
        self.lines.append("    " + s)
    def label(self, s):
        self.lines.append(s + ":")
    def raw(self, s):
        self.lines.append(s)
    def text(self):
        return "\n".join(self.lines) + "\n"

def vr(b, n):
    return f"v[{b}:{b+n-1}]" if n > 1 else f"v{b}"

def gen(o):
    g = G()
    S_MODE = o.mode == "S"
    nthreads = 512 if S_MODE else 256
    shape = o.shape
    L = o.lead
    NXB = 8
    V_XD, V_WD = 1, 2
    V_XA = [[3, 4], [5, 6]]
    V_WA = [[7, 8], [9, 10]]
    V_OUT = 11
    V_ZERO = 47
    V_T = 12
    V_SC, V_SH = 16, 32
    V_XB = 48
    V_WB = [80, 104]
    V_ACC = 128
    NBN = 8 if shape == 16 else 16
    S_XS, S_WS, S_OS = 8, 12, 16
    S_PS = 20
    S_WAVE, S_B0, S_N0 = 24, 25, 26
    S_M = [27, 28]
    S_DELTA, S_CNT = 29, 30
    S_XO1 = 31
    S_WO = [32, 33, 34, 35, 36, 37]
    S_XN, S_WN = 38, 39
    S_T = 40
    S_STAMP = 60

    def acc(sp, bg, d):
        if shape == 16:
            return V_ACC + ((sp * 2 + bg) * 2 + d) * 4
        return V_ACC + sp * 16
    def wfrag(p, t, d):
        return V_WB[p] + (t * 2 + d) * 4

    g.raw(HEADER + f"; @launch grid=(256,1,1) block=({nthreads},1,1) lds=163840")
    g.raw('.amdgcn_target "amdgcn-amd-amdhsa--gfx950"')
    g.raw(".text")
    g.raw(f".globl {KN}")
    g.raw(".p2align 8")
    g.raw(f".type {KN},@function")
    g.label(KN)
    g("s_cmp_ge_u32 s2, 256")
    g("s_cbranch_scc1 L_end")
    if o.stamp:
        g(f"s_memtime s[{S_STAMP}:{S_STAMP+1}]")
        g(f"s_memrealtime s[{S_STAMP+2}:{S_STAMP+3}]")
    g("s_load_dwordx4 s[4:7], s[0:1], 0")
    g("s_load_dwordx8 s[44:51], s[0:1], 16")
    g("s_load_dwordx2 s[52:53], s[0:1], 48")
    if o.stamp:
        g("s_load_dwordx2 s[54:55], s[0:1], 64")
    g("s_and_b32 s3, s2, 7")
    g(f"s_lshr_b32 s{S_T}, s2, 3")
    g(f"s_lshr_b32 s{S_B0}, s3, 1")
    g(f"s_lshl_b32 s{S_B0}, s{S_B0}, 3")
    g(f"s_lshr_b32 s{S_T+1}, s{S_T}, 2")
    g(f"s_add_u32 s{S_B0}, s{S_B0}, s{S_T+1}")
    g(f"s_lshl_b32 s{S_B0}, s{S_B0}, 19")
    g(f"s_and_b32 s{S_N0}, s3, 1")
    g(f"s_lshl_b32 s{S_N0}, s{S_N0}, 2")
    g(f"s_and_b32 s{S_T+1}, s{S_T}, 3")
    g(f"s_add_u32 s{S_N0}, s{S_N0}, s{S_T+1}")
    g(f"s_lshl_b32 s{S_N0}, s{S_N0}, 8")
    g(f"v_lshrrev_b32 v{V_T}, 6, v0")
    g("v_and_b32 v0, 63, v0")
    g(f"v_readfirstlane_b32 s{S_WAVE}, v{V_T}")
    g(f"v_lshrrev_b32 v{V_T}, 4, v0")
    g(f"v_sub_u32 v{V_T+1}, 0, v{V_T}")
    g(f"v_xor_b32 v{V_T+1}, v{V_T+1}, v0")
    g(f"v_and_b32 v{V_T+1}, 3, v{V_T+1}")
    g(f"v_lshlrev_b32 v{V_T+1}, 4, v{V_T+1}")
    g(f"v_lshrrev_b32 v{V_T+2}, 2, v0")
    g(f"v_lshl_add_u32 v{V_XD}, v{V_T+2}, 14, v{V_T+1}")
    g(f"s_and_b32 s{S_T}, s{S_WAVE}, 3")
    g(f"s_lshl_b32 s{S_T+1}, s{S_T}, 12")
    g(f"v_add_u32 v{V_XD}, s{S_T+1}, v{V_XD}")
    g(f"s_and_b32 s{S_T+2}, s{S_T}, 1")
    g(f"s_lshl_b32 s{S_T+2}, s{S_T+2}, 1")
    g(f"v_lshl_add_u32 v{V_T+1}, v{V_T}, 2, s{S_T+2}")
    g(f"v_xor_b32 v{V_T+1}, v{V_T+1}, v0")
    g(f"v_and_b32 v{V_T+1}, 15, v{V_T+1}")
    g(f"v_lshlrev_b32 v{V_T+1}, 4, v{V_T+1}")
    g(f"v_lshl_add_u32 v{V_WD}, v{V_T}, 11, v{V_T+1}")
    g(f"s_lshl_b32 s{S_T+1}, s{S_T}, 14")
    g(f"v_add_u32 v{V_WD}, s{S_T+1}, v{V_WD}")
    g(f"v_mov_b32 v{V_ZERO}, 0x7ff00000")
    g(f"s_mov_b32 s{S_XO1}, 261120")
    for j in range(6):
        t, qq = j >> 1, j & 1
        io = (j % 4) * 1024
        g(f"s_mov_b32 s{S_WO[j]}, {t * 2097152 + qq * 8192 - io}")
    g(f"s_mul_i32 s{S_M[1]}, s{S_T}, {WREG}")
    g(f"s_mov_b32 s{S_XS+3}, 0x20000")
    g(f"s_mov_b32 s{S_WS+3}, 0x20000")
    g(f"s_mov_b32 s{S_OS+3}, 0x20000")
    g(f"s_mov_b32 s{S_PS+3}, 0x20000")
    g(f"s_mov_b32 s{S_PS+2}, 2048")
    g(f"s_sub_u32 s{S_XN}, 16777216, s{S_B0}")
    g(f"s_sub_u32 s{S_WN}, 6291456, s{S_N0}")
    g("s_waitcnt lgkmcnt(0)")
    g(f"s_add_u32 s{S_XS}, s4, s{S_B0}")
    g(f"s_addc_u32 s{S_XS+1}, s5, 0")
    g(f"s_mov_b32 s{S_XS+2}, s{S_XN}")
    g(f"s_add_u32 s{S_WS}, s6, s{S_N0}")
    g(f"s_addc_u32 s{S_WS+1}, s7, 0")
    g(f"s_mov_b32 s{S_WS+2}, s{S_WN}")

    def dma_ops(m0reg):
        ops = []
        xs = f"s[{S_XS}:{S_XS+3}]"; ws = f"s[{S_WS}:{S_WS+3}]"
        def ld(v, srd, so, off):
            offs = f" offset:{off}" if off else ""
            return f"buffer_load_dwordx4 v{v}, {srd}, {so} offen{offs} lds"
        wl = [ld(V_WD, ws, f"s{S_WO[j]}", (j % 4) * 1024) for j in range(6)]
        xl = [ld(V_XD, xs, "0" if (i & 1) == 0 else f"s{S_XO1}", i * 1024) for i in range(4)]
        if o.only == "x": wl = [w_.replace(f"v{V_WD},", f"v{V_ZERO},").replace("offen", "offen") for w_ in wl]
        if o.only == "w": xl = [x_.replace(f"v{V_XD},", f"v{V_ZERO},") for x_ in xl]
        ops.append((f"s_add_u32 m0, s{m0reg}, 4096", wl[0]))
        ops += [(None, wl[1]), (None, wl[2]), (None, wl[3])]
        ops.append((f"s_add_u32 m0, s{m0reg}, 8192", wl[4]))
        ops.append((None, wl[5]))
        ops.append((f"s_mov_b32 m0, s{m0reg}", xl[0]))
        ops += [(None, xl[1]), (None, xl[2]), (None, xl[3])]
        return ops
    def srd_adv():
        return [f"s_add_u32 s{S_XS}, s{S_XS}, 64", f"s_addc_u32 s{S_XS+1}, s{S_XS+1}, 0",
                f"s_add_u32 s{S_WS}, s{S_WS}, 65536", f"s_addc_u32 s{S_WS+1}, s{S_WS+1}, 0"]
    def emit_dma_burst(m0reg):
        for m, d in dma_ops(m0reg):
            if m:
                g(m); g("s_nop 0")
            g(d)
        for s in srd_adv(): g(s)

    NPRE = 4 if S_MODE else 3
    if S_MODE:
        g(f"s_cmp_lt_u32 s{S_WAVE}, 4")
        g("s_cbranch_scc1 L_consumer")
        for st in range(4):
            emit_dma_burst(S_M[1])
            g(f"s_add_u32 s{S_M[1]}, s{S_M[1]}, {SLOT}")
        g(f"s_sub_u32 s{S_M[1]}, s{S_M[1]}, {4*SLOT}")
        g(f"s_add_u32 s{S_M[0]}, s{S_M[1]}, {4*SLOT}")
        g("s_waitcnt vmcnt(30)")
        g("s_barrier")
        g(f"s_mov_b32 s{S_CNT}, 4")
        g.label("L_ld_loop")
        g("s_waitcnt vmcnt(20)")
        g("s_barrier")
        g(f"s_cmp_lt_u32 s{S_CNT}, 32")
        g(f"s_cselect_b32 s{S_XS+2}, s{S_XN}, 0")
        g(f"s_cselect_b32 s{S_WS+2}, s{S_WN}, 0")
        if not o.nodma: emit_dma_burst(S_M[1])
        g(f"s_add_u32 s{S_M[1]}, s{S_M[1]}, {SLOT}")
        g(f"s_cmp_eq_u32 s{S_M[1]}, s{S_M[0]}")
        g(f"s_cselect_b32 s{S_T}, {4*SLOT}, 0")
        g(f"s_sub_u32 s{S_M[1]}, s{S_M[1]}, s{S_T}")
        g(f"s_add_u32 s{S_CNT}, s{S_CNT}, 1")
        g(f"s_cmp_lt_u32 s{S_CNT}, 36")
        g("s_cbranch_scc1 L_ld_loop")
        g("s_endpgm")
        g.label("L_consumer")

    if shape == 16:
        g(f"v_lshrrev_b32 v{V_T}, 4, v0")
        g(f"v_lshlrev_b32 v{V_T}, 3, v{V_T}")
    else:
        g(f"v_lshrrev_b32 v{V_T}, 5, v0")
        g(f"v_lshlrev_b32 v{V_T}, 4, v{V_T}")
    g(f"s_lshl_b32 s{S_T+1}, s{S_T}, 6")
    g(f"s_add_u32 s{S_T+1}, s{S_T+1}, s{S_N0}")
    g(f"v_add_u32 v{V_T}, s{S_T+1}, v{V_T}")
    V_RAW = V_XB
    nraw = NBN // 2
    npl = 0
    for pi in range(4):
        g(f"s_mov_b32 s{S_PS}, s{44+2*pi}")
        g(f"s_mov_b32 s{S_PS+1}, s{45+2*pi}")
        for d in range(2):
            if shape == 16:
                g(f"buffer_load_dwordx2 {vr(V_RAW+pi*nraw+2*d,2)}, v{V_T}, s[{S_PS}:{S_PS+3}], 0 offen offset:{32*d}")
            else:
                g(f"buffer_load_dwordx4 {vr(V_RAW+pi*nraw+4*d,4)}, v{V_T}, s[{S_PS}:{S_PS+3}], 0 offen offset:{32*d}")
            npl += 1
    if not S_MODE:
        for st in range(3):
            emit_dma_burst(S_M[1])
            g(f"s_add_u32 s{S_M[1]}, s{S_M[1]}, {SLOT}")
        g(f"s_mov_b32 s{S_M[0]}, s{S_M[1]}")
        g(f"s_sub_u32 s{S_M[1]}, s{S_M[1]}, {3*SLOT}")
    if shape == 16:
        g(f"v_and_b32 v{V_T}, 15, v0")
        g(f"v_lshrrev_b32 v{V_T+1}, 2, v{V_T}")
        g(f"v_sub_u32 v{V_T+1}, 0, v{V_T+1}")
        g(f"v_lshrrev_b32 v{V_T+2}, 4, v0")
        g(f"v_xor_b32 v{V_T+1}, v{V_T+1}, v{V_T+2}")
        g(f"v_and_b32 v{V_T+1}, 3, v{V_T+1}")
        g(f"v_lshlrev_b32 v{V_T+1}, 4, v{V_T+1}")
        g(f"v_lshl_add_u32 v{V_XA[0][0]}, v{V_T}, 6, v{V_T+1}")
        g(f"v_add_u32 v{V_XA[1][0]}, {SLOT}, v{V_XA[0][0]}")
        g(f"v_bfe_u32 v{V_T}, v0, 2, 2")
        g(f"v_xor_b32 v{V_T+1}, s{S_T}, v{V_T}")
        g(f"v_lshlrev_b32 v{V_T+1}, 6, v{V_T+1}")
        g(f"v_lshl_add_u32 v{V_T+1}, v{V_T}, 8, v{V_T+1}")
        g(f"v_mul_u32_u24 v{V_T+3}, {WREG}, v{V_T+2}")
        g(f"v_add_u32 v{V_T+1}, v{V_T+1}, v{V_T+3}")
        g(f"v_and_b32 v{V_T+2}, 1, v{V_T+2}")
        g(f"v_lshl_add_u32 v{V_T+1}, v{V_T+2}, 5, v{V_T+1}")
        g(f"v_and_b32 v{V_T+2}, 3, v0")
        g(f"v_lshl_add_u32 v{V_T+1}, v{V_T+2}, 3, v{V_T+1}")
        g(f"v_add_u32 v{V_WA[0][0]}, 4096, v{V_T+1}")
        g(f"v_xor_b32 v{V_WA[0][1]}, 32, v{V_WA[0][0]}")
        g(f"v_add_u32 v{V_WA[1][0]}, {SLOT}, v{V_WA[0][0]}")
        g(f"v_add_u32 v{V_WA[1][1]}, {SLOT}, v{V_WA[0][1]}")
        addr_regs = [[V_XA[p][0], V_WA[p][0], V_WA[p][1]] for p in range(2)]
    else:
        g(f"v_and_b32 v{V_T}, 15, v0")
        g(f"v_lshrrev_b32 v{V_T+1}, 2, v{V_T}")
        g(f"v_sub_u32 v{V_T+1}, 0, v{V_T+1}")
        g(f"v_lshrrev_b32 v{V_T+2}, 5, v0")
        g(f"v_xor_b32 v{V_T+1}, v{V_T+1}, v{V_T+2}")
        g(f"v_and_b32 v{V_T+1}, 3, v{V_T+1}")
        g(f"v_lshlrev_b32 v{V_T+1}, 4, v{V_T+1}")
        g(f"v_lshl_add_u32 v{V_T+1}, v{V_T}, 6, v{V_T+1}")
        g(f"v_bfe_u32 v{V_T+3}, v0, 4, 1")
        g(f"v_lshl_add_u32 v{V_XA[0][0]}, v{V_T+3}, 10, v{V_T+1}")
        g(f"v_xor_b32 v{V_XA[0][1]}, 32, v{V_XA[0][0]}")
        g(f"v_add_u32 v{V_XA[1][0]}, {SLOT}, v{V_XA[0][0]}")
        g(f"v_add_u32 v{V_XA[1][1]}, {SLOT}, v{V_XA[0][1]}")
        g(f"v_bfe_u32 v{V_T}, v0, 2, 2")
        g(f"v_xor_b32 v{V_T+1}, s{S_T}, v{V_T}")
        g(f"v_lshlrev_b32 v{V_T+1}, 6, v{V_T+1}")
        g(f"v_lshl_add_u32 v{V_T+1}, v{V_T}, 8, v{V_T+1}")
        g(f"v_mul_u32_u24 v{V_T}, {WREG}, v{V_T+2}")
        g(f"v_add_u32 v{V_T+1}, v{V_T+1}, v{V_T}")
        g(f"v_xor_b32 v{V_T}, v{V_T+2}, v{V_T+3}")
        g(f"v_lshl_add_u32 v{V_T+1}, v{V_T}, 5, v{V_T+1}")
        g(f"v_and_b32 v{V_T}, 1, v0")
        g(f"v_lshl_add_u32 v{V_T+1}, v{V_T}, 4, v{V_T+1}")
        g(f"v_bfe_u32 v{V_T}, v0, 1, 1")
        g(f"v_lshl_add_u32 v{V_T+1}, v{V_T}, 3, v{V_T+1}")
        g(f"v_add_u32 v{V_WA[0][0]}, 4096, v{V_T+1}")
        g(f"v_add_u32 v{V_WA[1][0]}, {SLOT}, v{V_WA[0][0]}")
        addr_regs = [[V_XA[p][0], V_XA[p][1], V_WA[p][0]] for p in range(2)]
    g(f"s_add_u32 s{S_T+1}, s{S_B0}, s{S_N0}")
    g(f"s_add_u32 s{S_OS}, s52, s{S_T+1}")
    g(f"s_addc_u32 s{S_OS+1}, s53, 0")
    g(f"s_sub_u32 s{S_OS+2}, 16777216, s{S_T+1}")
    g(f"v_and_b32 v{V_T}, 15, v0")
    g(f"v_lshlrev_b32 v{V_T}, 14, v{V_T}")
    g(f"v_bfe_u32 v{V_T+1}, v0, 4, 1")
    g(f"v_lshl_add_u32 v{V_T}, v{V_T+1}, 5, v{V_T}")
    g(f"v_lshrrev_b32 v{V_T+1}, 5, v0")
    g(f"v_lshl_add_u32 v{V_T}, v{V_T+1}, 4, v{V_T}")
    g(f"s_lshl_b32 s{S_T+1}, s{S_T}, 6")
    g(f"v_add_u32 v{V_OUT}, s{S_T+1}, v{V_T}")
    for i in range(128):
        g(f"v_mov_b32 v{V_ACC+i}, 0")
    g(f"s_waitcnt vmcnt({0 if S_MODE else 30})")
    M_, V_, G_, B_ = (V_RAW + i * nraw for i in range(4))
    TA, TB = V_WB[1], V_WB[1] + 1
    g(f"s_mov_b32 s{S_T+1}, 0x3727c5ac")
    def unpack(dst, src, hi):
        if hi: g(f"v_and_b32 v{dst}, 0xffff0000, v{src}")
        else:  g(f"v_lshlrev_b32 v{dst}, 16, v{src}")
    for k in range(nraw):
        lo, hi = V_SC + 2 * k, V_SC + 2 * k + 1
        unpack(lo, V_ + k, 0); unpack(hi, V_ + k, 1)
        g(f"v_add_f32 v{lo}, s{S_T+1}, v{lo}")
        g(f"v_add_f32 v{hi}, s{S_T+1}, v{hi}")
        g(f"v_cvt_pk_bf16_f32 v{TA}, v{lo}, v{hi}")
        unpack(lo, TA, 0); unpack(hi, TA, 1)
        g(f"v_sqrt_f32 v{lo}, v{lo}")
        g(f"v_sqrt_f32 v{hi}, v{hi}")
        g("s_nop 0")
        g(f"v_cvt_pk_bf16_f32 v{TA}, v{lo}, v{hi}")
        unpack(lo, TA, 0); unpack(hi, TA, 1)
        g(f"v_rcp_f32 v{lo}, v{lo}")
        g(f"v_rcp_f32 v{hi}, v{hi}")
        g("s_nop 0")
        g(f"v_cvt_pk_bf16_f32 v{TA}, v{lo}, v{hi}")
        unpack(lo, TA, 0); unpack(hi, TA, 1)
        unpack(TA, G_ + k, 0); unpack(TB, G_ + k, 1)
        g(f"v_mul_f32 v{lo}, v{lo}, v{TA}")
        g(f"v_mul_f32 v{hi}, v{hi}, v{TB}")
        g(f"v_cvt_pk_bf16_f32 v{TA}, v{lo}, v{hi}")
        unpack(lo, TA, 0); unpack(hi, TA, 1)
        slo, shi = V_SH + 2 * k, V_SH + 2 * k + 1
        unpack(slo, B_ + k, 0); unpack(shi, B_ + k, 1)
        unpack(TA, M_ + k, 0); unpack(TB, M_ + k, 1)
        g(f"v_fma_f32 v{slo}, -v{TA}, v{lo}, v{slo}")
        g(f"v_fma_f32 v{shi}, -v{TB}, v{hi}, v{shi}")

    def xread(p, f):
        s, q = f >> 1, f & 1
        buf = V_XB + (f % NXB) * 4
        if shape == 16:
            off = (s >> 1) * WREG + (2 * (s & 1) + q) * 1024
            return f"ds_read_b128 {vr(buf,4)}, v{V_XA[p][0]} offset:{off}"
        off = (s >> 1) * WREG + 2 * (s & 1) * 1024
        return f"ds_read_b128 {vr(buf,4)}, v{V_XA[p][q]} offset:{off}"
    def wread(p, t, d, h):
        dst = wfrag(p, t, d) + 2 * h
        if shape == 16:
            return f"ds_read_b64_tr_b16 {vr(dst,2)}, v{V_WA[p][d]} offset:{t*2048 + h*1024}"
        return f"ds_read_b64_tr_b16 {vr(dst,2)}, v{V_WA[p][0]} offset:{d*2*WREG + t*2048 + h*1024}"
    def group_mfmas(p, f):
        s, q = f >> 1, f & 1
        buf = V_XB + (f % NXB) * 4
        out = []
        for t in range(3):
            sp = s - t + 1
            if not 0 <= sp <= 7: continue
            if shape == 16:
                for d in range(2):
                    a = acc(sp, q, d)
                    out.append((f"v_mfma_f32_16x16x32_bf16 {vr(a,4)}, {vr(wfrag(p,t,d),4)}, {vr(buf,4)}, {vr(a,4)}",
                                [("x", f), ("w", t, d, 0), ("w", t, d, 1)]))
            else:
                a = acc(sp, 0, 0)
                out.append((f"v_mfma_f32_32x32x16_bf16 {vr(a,16)}, {vr(wfrag(p,t,q),4)}, {vr(buf,4)}, {vr(a,16)}",
                            [("x", f), ("w", t, q, 0), ("w", t, q, 1)]))
        return out
    if shape == 16:
        worder = [(t, d, h) for t in range(3) for d in range(2) for h in range(2)]
    else:
        worder = [(t, d, h) for d in range(2) for t in range(2) for h in range(2)] + \
                 [(2, d, h) for d in range(2) for h in range(2)]

    def stage_stream(p):
        items = []
        groups = [group_mfmas(p, f) for f in range(16)]
        nm = sum(len(x) for x in groups)
        fill = [[] for _ in range(nm)]
        start = [sum(len(x) for x in groups[:f]) for f in range(17)]
        fb = 16 - L
        for f in range(16):
            if f + L < 16:
                fill[start[f]].append(("l", xread(p, f + L), ("x", f + L, 0)))
        ib = start[fb + 1] - 1
        fill[ib].append(("bar",))
        fill[ib].append(("l", xread(1 - p, 0), ("x", 0, 1)))
        taken = set()
        for f in range(fb + 1, 16):
            fill[start[f]].append(("l", xread(1 - p, f + L - 16), ("x", f + L - 16, 1)))
            taken.add(start[f])
        free = [i for i in range(ib + 1, nm) if i not in taken]
        per = o.wper
        k = 0
        for w_ in worder:
            i = free[min(k // per, len(free) - 1)]
            fill[i].append(("l", wread(1 - p, *w_), ("w",) + w_ + (1,)))
            k += 1
        irot = start[15 - L] + 1
        for j, r in enumerate(addr_regs[p]):
            fill[irot + j].append(("i", f"v_add_u32 v{r}, s{S_DELTA}, v{r}"))
        if not S_MODE:
            ops = dma_ops(S_M[p])
            i0 = o.dma0
            step = o.dmastep
            fill[0].append(("i", f"s_cmp_lt_u32 s{S_CNT}, {29 - p}"))
            fill[0].append(("i", f"s_cselect_b32 s{S_XS+2}, s{S_XN}, 0"))
            fill[1].append(("i", f"s_cselect_b32 s{S_WS+2}, s{S_WN}, 0"))
            for j, (m, d) in enumerate(ops):
                i = i0 + j * step
                assert i < ib, (i, ib)
                if m: fill[i - 1].append(("i", m))
                fill[i].append(("i", d))
            il = i0 + (len(ops) - 1) * step
            for j, s_ in enumerate(srd_adv()):
                fill[il + 1 + j // 2].append(("i", s_))
            fill[il + 3].append(("i", f"s_{'sub' if p == 0 else 'add'}_u32 s{S_M[p]}, s{S_M[p]}, s{S_DELTA}"))
        if p == 1:
            fill[nm - 4].append(("i", f"s_sub_u32 s{S_DELTA}, 0, s{S_DELTA}"))
            fill[nm - 3].append(("i", f"s_add_u32 s{S_CNT}, s{S_CNT}, 2"))
            fill[nm - 2].append(("i", f"s_cmp_lt_u32 s{S_CNT}, 32"))
        i = 0
        for f in range(16):
            for (txt, needs) in groups[f]:
                items.append(("m", txt, needs))
                items += fill[i]
                i += 1
        return items

    streams = [stage_stream(0), stage_stream(1)]
    def place_waits():
        seq = []
        done = -1
        out = None
        for it in range(3):
            cur = []
            for p in range(2):
                st = 2 * it + p
                for item in streams[p]:
                    if item[0] == "m":
                        need = -1
                        for n_ in item[2]:
                            key = n_ + (st,)
                            idx = [i for i, t_ in enumerate(seq) if t_ == key]
                            if idx: need = max(need, idx[-1])
                            else: assert st == 0, key
                        if need > done:
                            cnt = len(seq) - 1 - need
                            cnt = min(cnt, 15)
                            cur.append(f"s_waitcnt lgkmcnt({cnt})")
                            done = len(seq) - 1 - cnt
                        cur.append(item[1])
                    elif item[0] == "l":
                        tag = item[2]
                        seq.append(tag[:-1] + (st + tag[-1],))
                        cur.append(item[1])
                    elif item[0] == "bar":
                        cur.append("s_waitcnt lgkmcnt(0)" if S_MODE else "s_waitcnt vmcnt(20) lgkmcnt(0)")
                        cur.append("s_barrier")
                        done = len(seq) - 1
                    else:
                        cur.append(item[1])
            if it == 2: assert cur == out
            out = cur
        return out
    body = place_waits()
    if o.nolds:
        body = [b for b in body if not (b.startswith("ds_read") or b.startswith("s_waitcnt lgkmcnt"))]
    if o.nodma:
        body = [b for b in body if not b.startswith("buffer_load")]
    if o.nolds and o.order != "x":
        nb = []
        half = []
        ms = [b for b in body if b.startswith("v_mfma")]
        n = len(ms) // 2
        res = []
        for p in range(2):
            m = ms[p * n:(p + 1) * n]
            key = lambda t: t.split(",")[0]
            if o.order == "acc":
                m = sorted(m, key=lambda t: int(t.split("[")[1].split(":")[0]))
            elif o.order == "w":
                m = sorted(m, key=lambda t: int(t.split("[")[2].split(":")[0]))
            elif o.order == "swap":
                def sw(t):
                    a = t.split(", ")
                    return ", ".join([a[0], a[2], a[1], a[3]])
                m = [sw(t) for t in m]
            res += m
        it = iter(res)
        body = [next(it) if b.startswith("v_mfma") else b for b in body]
    if o.keep < 0:
        body = [b for b in body if not b.startswith("v_mfma")]
    if o.keep > 0:
        nb = []; i = 0
        for b in body:
            if b.startswith("v_mfma"):
                if i % 11 < o.keep: nb.append(b)
                elif o.fillnop >= 0: nb.append(f"s_nop {o.fillnop}")
                i += 1
            else: nb.append(b)
        body = nb
    if o.valu:
        nb = []; i = 0; k = 0
        nm = sum(b.startswith("v_mfma") for b in body)
        for b in body:
            nb.append(b)
            if b.startswith("v_mfma"):
                i += 1
                while k * nm < i * 2 * o.valu:
                    a = 16 + (k % 8) * 2; x1 = V_XB + (k * 2) % 32; x2 = V_WB[0] + (k * 2 + 6) % 48
                    if o.valuop == "add": nb.append(f"v_add_f32 v{a}, v{x1}, v{x2}")
                    elif o.valuop == "pk": nb.append(f"v_pk_add_f32 v[{a}:{a+1}], v[{x1}:{x1+1}], v[{x2}:{x2+1}]")
                    elif o.valuop == "cvt": nb.append(f"v_cvt_pk_bf16_f32 v{a}, v{x1}, v{x2}")
                    elif o.valuop == "and": nb.append(f"v_and_b32 v{a}, 0xffff0000, v{x1}")
                    elif o.valuop == "dot": nb.append(f"v_dot2_f32_bf16 v{a}, v{x1}, v{x2}, v{x2+1}")
                    k += 1
        body = nb

    if not S_MODE:
        g("s_waitcnt vmcnt(20)")
    g("s_barrier")
    if o.stamp:
        g(f"s_memtime s[{S_STAMP+4}:{S_STAMP+5}]")
        g(f"s_memrealtime s[{S_STAMP+14}:{S_STAMP+15}]")
        g("s_waitcnt lgkmcnt(0)")
    for w_ in worder: g(wread(0, *w_))
    for f in range(L): g(xread(0, f))
    if o.nolds:
        g("s_waitcnt lgkmcnt(0)")
        for w_ in worder: g(wread(1, *w_))
        g("s_waitcnt lgkmcnt(0)")
        for f in range(L, 8): g(xread(0, f))
    g(f"s_mov_b32 s{S_DELTA}, {2*SLOT}")
    g(f"s_mov_b32 s{S_CNT}, 0")
    g("s_waitcnt lgkmcnt(0)")
    g.raw(".p2align 6")
    g.label("L_loop")
    for s_ in body: g(s_)
    g("s_cbranch_scc1 L_loop")
    if o.stamp:
        g(f"s_memtime s[{S_STAMP+6}:{S_STAMP+7}]")
        g(f"s_memrealtime s[{S_STAMP+16}:{S_STAMP+17}]")
    g("s_nop 15")
    NL2E = "0xbfb8aa3b"
    g(f"s_mov_b32 s{S_T+2}, {NL2E}")
    P0 = V_XB
    def act(a, k, t):
        return
    units = []
    if shape == 16:
        for sp in range(8):
            for bg in range(2):
                regs = [(acc(sp, bg, d) + j, d * 4 + j) for d in range(2) for j in range(4)]
                units.append((regs, (bg * 128 + sp) * 2048))
    else:
        for sp in range(8):
            regs = [(acc(sp, 0, 0) + i, i) for i in range(16)]
            units.append((regs, sp * 2048))
    ui = 0
    for regs, soff in units:
        n = len(regs)
        E = V_WB[0] + (ui % 2) * 16
        P = V_XB + (ui % 4) * 8
        for (a, k) in regs:
            g(f"v_fma_f32 v{a}, v{a}, v{V_SC+k}, v{V_SH+k}")
        for i, (a, k) in enumerate(regs):
            g(f"v_mul_f32 v{E+i}, s{S_T+2}, v{a}")
        for i in range(n):
            g(f"v_exp_f32 v{E+i}, v{E+i}")
        for i in range(n):
            g(f"v_add_f32 v{E+i}, 1.0, v{E+i}")
        for i in range(n):
            g(f"v_rcp_f32 v{E+i}, v{E+i}")
        for i, (a, k) in enumerate(regs):
            g(f"v_mul_f32 v{a}, v{a}, v{E+i}")
        if shape == 16:
            for i in range(4):
                g(f"v_cvt_pk_bf16_f32 v{P+i}, v{regs[2*i][0]}, v{regs[2*i+1][0]}")
            g(f"s_mov_b32 s{S_T+3}, {soff}")
            g("s_nop 0")
            g(f"v_permlane16_swap_b32 v{P}, v{P+2}")
            g(f"v_permlane16_swap_b32 v{P+1}, v{P+3}")
            g(f"buffer_store_dwordx4 {vr(P,4)}, v{V_OUT}, s[{S_OS}:{S_OS+3}], s{S_T+3} offen{o.stflags}")
        else:
            for i in range(8):
                g(f"v_cvt_pk_bf16_f32 v{P+i}, v{regs[2*i][0]}, v{regs[2*i+1][0]}")
            g(f"s_mov_b32 s{S_T+3}, {soff}")
            g(f"s_mov_b32 s{S_T+4}, {soff + 128*2048}")
            for i in range(4):
                g(f"v_permlane16_swap_b32 v{P+i}, v{P+4+i}")
            g(f"buffer_store_dwordx4 {vr(P,4)}, v{V_OUT}, s[{S_OS}:{S_OS+3}], s{S_T+3} offen{o.stflags}")
            g(f"buffer_store_dwordx4 {vr(P+4,4)}, v{V_OUT}, s[{S_OS}:{S_OS+3}], s{S_T+4} offen{o.stflags}")
        ui += 1
    if o.stamp:
        g(f"s_memtime s[{S_STAMP+8}:{S_STAMP+9}]")
        g("s_waitcnt vmcnt(0)")
        g(f"s_memtime s[{S_STAMP+10}:{S_STAMP+11}]")
        g(f"s_memrealtime s[{S_STAMP+12}:{S_STAMP+13}]")
        g("s_waitcnt lgkmcnt(0)")
        g(f"s_lshl_b32 s{S_T+1}, s2, 2")
        g(f"s_add_u32 s{S_T+1}, s{S_T+1}, s{S_T}")
        g(f"s_lshl_b32 s{S_T+1}, s{S_T+1}, 6")
        g(f"s_mov_b32 s{S_PS}, s54")
        g(f"s_mov_b32 s{S_PS+1}, s55")
        g(f"s_mov_b32 s{S_PS+2}, 0x100000")
        g(f"v_mov_b32 v{V_T}, s{S_T+1}")
        for i in range(14):
            g(f"v_mov_b32 v{V_WB[0]+i}, s{S_STAMP+i}")
        g(f"v_mov_b32 v{V_WB[0]+14}, s{S_STAMP+14}")
        g(f"v_mov_b32 v{V_WB[0]+15}, s{S_STAMP+16}")
        g("s_mov_b64 exec, 1")
        for i in range(4):
            g(f"buffer_store_dwordx4 {vr(V_WB[0]+4*i,4)}, v{V_T}, s[{S_PS}:{S_PS+3}], 0 offen offset:{16*i}")
    g.label("L_end")
    g("s_endpgm")
    g.raw('.section .rodata,"a"')
    g.raw(".p2align 6")
    g.raw(f".amdhsa_kernel {KN}")
    g.raw("  .amdhsa_next_free_vgpr 256")
    g.raw("  .amdhsa_next_free_sgpr 96")
    g.raw("  .amdhsa_accum_offset 256")
    g.raw("  .amdhsa_group_segment_fixed_size 0")
    g.raw("  .amdhsa_kernarg_size 72")
    g.raw("  .amdhsa_user_sgpr_count 2")
    g.raw("  .amdhsa_user_sgpr_kernarg_segment_ptr 1")
    g.raw("  .amdhsa_system_sgpr_workgroup_id_x 1")
    g.raw(".end_amdhsa_kernel")
    return g.text()

if __name__ == "__main__":
    ap = argparse.ArgumentParser()
    ap.add_argument("--mode", default="U")
    ap.add_argument("--shape", type=int, default=16)
    ap.add_argument("--lead", type=int, default=6)
    ap.add_argument("--wper", type=int, default=1)
    ap.add_argument("--dma0", type=int, default=3)
    ap.add_argument("--dmastep", type=int, default=5)
    ap.add_argument("--stflags", default="")
    ap.add_argument("--stamp", action="store_true")
    ap.add_argument("--nolds", action="store_true")
    ap.add_argument("--nodma", action="store_true")
    ap.add_argument("--order", default="x")
    ap.add_argument("--valu", type=int, default=0)
    ap.add_argument("--valuop", default="add")
    ap.add_argument("--keep", type=int, default=0)
    ap.add_argument("--only", default="")
    ap.add_argument("--fillnop", type=int, default=-1)
    ap.add_argument("--rot", type=int, default=0)
    ap.add_argument("-o", default="-")
    o = ap.parse_args()
    if o.stflags: o.stflags = " " + o.stflags
    t = gen(o)
    if o.o == "-": sys.stdout.write(t)
    else: open(o.o, "w").write(t)
```

```python
import sys, argparse
from gen import HEADER, KN, G, vr

XSLOT = 32768
WBASE = 65536
WSLOT = 24576
WREG = 6144

def gen(o):
    g = G()
    L = o.lead
    NXB = 8
    V_XD = [1, 2, 3, 4]
    V_WD = 5
    V_XA = [6, 7]
    V_WA = [8, 9]
    V_OUT = 11
    V_T = 12
    V_SC, V_SH = 16, 32
    V_ZERO = 47
    V_XB = 48
    V_WB = [80, 104]
    V_ACC = 128
    NBN = 8
    S_XS, S_WS, S_OS, S_PS = 8, 12, 16, 20
    S_WAVE, S_B0, S_N0 = 24, 25, 26
    S_MX, S_MW = 27, 28
    S_DELTA, S_CNT = 29, 30
    S_XO = [None, 31, 56, 57]
    S_WO = [32, 33, 34, 35, 36, 37]
    S_XN, S_WN = 38, 39
    S_T = 40
    S_KX, S_KW, S_WLIM = 58, 59, 78
    S_STAMP = 60

    def acc(sp, bg, d): return V_ACC + ((sp * 2 + bg) * 2 + d) * 4
    def wfrag(p, t, d): return V_WB[p] + (t * 2 + d) * 4

    g.raw(HEADER + f"; @launch grid=(256,1,1) block=(512,1,1) lds=163840")
    g.raw('.amdgcn_target "amdgcn-amd-amdhsa--gfx950"')
    g.raw(".text")
    g.raw(f".globl {KN}")
    g.raw(".p2align 8")
    g.raw(f".type {KN},@function")
    g.label(KN)
    g("s_cmp_ge_u32 s2, 256")
    g("s_cbranch_scc1 L_end")
    if o.stamp:
        g(f"s_memtime s[{S_STAMP}:{S_STAMP+1}]")
        g(f"s_memrealtime s[{S_STAMP+2}:{S_STAMP+3}]")
    g("s_load_dwordx4 s[4:7], s[0:1], 0")
    g("s_load_dwordx8 s[44:51], s[0:1], 16")
    g("s_load_dwordx2 s[52:53], s[0:1], 48")
    if o.stamp:
        g("s_load_dwordx2 s[54:55], s[0:1], 64")
    g("s_and_b32 s3, s2, 7")
    g(f"s_lshr_b32 s{S_T}, s2, 3")
    if o.map == "8x4":
        g(f"s_lshr_b32 s{S_B0}, s3, 1")
        g(f"s_lshl_b32 s{S_B0}, s{S_B0}, 3")
        g(f"s_lshr_b32 s{S_T+1}, s{S_T}, 2")
        g(f"s_add_u32 s{S_B0}, s{S_B0}, s{S_T+1}")
        g(f"s_and_b32 s{S_N0}, s3, 1")
        g(f"s_lshl_b32 s{S_N0}, s{S_N0}, 2")
        g(f"s_and_b32 s{S_T+1}, s{S_T}, 3")
        g(f"s_add_u32 s{S_N0}, s{S_N0}, s{S_T+1}")
    elif o.map == "4x8":
        g(f"s_lshl_b32 s{S_B0}, s3, 2")
        g(f"s_lshr_b32 s{S_T+1}, s{S_T}, 3")
        g(f"s_add_u32 s{S_B0}, s{S_B0}, s{S_T+1}")
        g(f"s_and_b32 s{S_N0}, s{S_T}, 7")
    g(f"s_lshl_b32 s{S_B0}, s{S_B0}, 19")
    g(f"s_lshl_b32 s{S_N0}, s{S_N0}, 8")
    g(f"v_lshrrev_b32 v{V_T}, 6, v0")
    g("v_and_b32 v0, 63, v0")
    g(f"v_readfirstlane_b32 s{S_WAVE}, v{V_T}")
    g(f"s_mov_b32 s{S_XS+3}, 0x20000")
    g(f"s_mov_b32 s{S_WS+3}, 0x20000")
    g(f"s_mov_b32 s{S_OS+3}, 0x20000")
    g(f"s_mov_b32 s{S_PS+3}, 0x20000")
    g(f"s_and_b32 s{S_T}, s{S_WAVE}, 3")
    g(f"s_cmp_lt_u32 s{S_WAVE}, 4")
    g("s_cbranch_scc1 L_consumer")

    g(f"v_lshrrev_b32 v{V_T}, 4, v0")
    g(f"v_xor_b32 v{V_T+1}, v{V_T}, v0")
    g(f"v_and_b32 v{V_T+1}, 7, v{V_T+1}")
    g(f"v_lshlrev_b32 v{V_T+1}, 4, v{V_T+1}")
    g(f"v_lshrrev_b32 v{V_T+2}, 3, v0")
    g(f"v_lshl_add_u32 v{V_XD[0]}, v{V_T+2}, 14, v{V_T+1}")
    g(f"s_lshl_b32 s{S_T+1}, s{S_T}, 12")
    g(f"v_add_u32 v{V_XD[0]}, s{S_T+1}, v{V_XD[0]}")
    g(f"v_xor_b32 v{V_XD[1]}, 64, v{V_XD[0]}")
    g(f"v_add_u32 v{V_XD[2]}, 2048, v{V_XD[0]}")
    g(f"v_add_u32 v{V_XD[3]}, 2048, v{V_XD[1]}")
    g(f"s_and_b32 s{S_T+2}, s{S_T}, 1")
    g(f"s_lshl_b32 s{S_T+2}, s{S_T+2}, 1")
    g(f"v_lshl_add_u32 v{V_T+1}, v{V_T}, 2, s{S_T+2}")
    g(f"v_xor_b32 v{V_T+1}, v{V_T+1}, v0")
    g(f"v_and_b32 v{V_T+1}, 15, v{V_T+1}")
    g(f"v_lshlrev_b32 v{V_T+1}, 4, v{V_T+1}")
    g(f"v_lshl_add_u32 v{V_WD}, v{V_T}, 11, v{V_T+1}")
    g(f"s_lshl_b32 s{S_T+1}, s{S_T}, 14")
    g(f"v_add_u32 v{V_WD}, s{S_T+1}, v{V_WD}")
    if o.only: g(f"v_mov_b32 v{V_ZERO}, 0x7ff00000")
    for i in range(1, 4):
        g(f"s_mov_b32 s{S_XO[i]}, {i * (131072 - 1024)}")
    for j in range(6):
        t, qq = j >> 1, j & 1
        g(f"s_mov_b32 s{S_WO[j]}, {t * 2097152 + qq * 8192 - (j % 4) * 1024}")
    g(f"s_lshl_b32 s{S_MX}, s{S_T}, 13")
    g(f"s_mul_i32 s{S_MW}, s{S_T}, {WREG}")
    g(f"s_add_u32 s{S_MW}, s{S_MW}, {WBASE}")
    g(f"s_add_u32 s{S_WLIM}, s{S_MW}, {4*WSLOT}")
    g(f"s_sub_u32 s{S_XN}, 16777216, s{S_B0}")
    g(f"s_sub_u32 s{S_WN}, 6291456, s{S_N0}")
    if o.rot:
        if o.rotsel == "m": g(f"s_lshr_b32 s{S_KX}, s3, 1")
        elif o.rotsel == "xcd": g(f"s_mov_b32 s{S_KX}, s3")
        elif o.rotsel == "n": g(f"s_and_b32 s{S_KX}, s3, 1")
        g(f"s_mul_i32 s{S_KX}, s{S_KX}, {o.rot}")
        g(f"s_and_b32 s{S_KX}, s{S_KX}, 15")
        g(f"s_lshl_b32 s{S_KW}, s{S_KX}, 1")
        g(f"s_lshl_b32 s{S_T+1}, s{S_KX}, 7")
        g(f"s_add_u32 s{S_B0}, s{S_B0}, s{S_T+1}")
        g(f"s_lshl_b32 s{S_T+1}, s{S_KX}, 17")
        g(f"s_add_u32 s{S_N0}, s{S_N0}, s{S_T+1}")
    g("s_waitcnt lgkmcnt(0)")
    g(f"s_add_u32 s{S_XS}, s4, s{S_B0}")
    g(f"s_addc_u32 s{S_XS+1}, s5, 0")
    g(f"s_mov_b32 s{S_XS+2}, s{S_XN}")
    g(f"s_add_u32 s{S_WS}, s6, s{S_N0}")
    g(f"s_addc_u32 s{S_WS+1}, s7, 0")
    g(f"s_mov_b32 s{S_WS+2}, s{S_WN}")
    xs = f"s[{S_XS}:{S_XS+3}]"; ws = f"s[{S_WS}:{S_WS+3}]"
    def ld(v, srd, so, off, fl):
        offs = f" offset:{off}" if off else ""
        return f"buffer_load_dwordx4 v{v}, {srd}, {so} offen{offs}{fl} lds"
    def x_chunk():
        for ii in range(8):
            if ii == 0: g(f"s_mov_b32 m0, s{S_MX}"); g("s_nop 0")
            if ii == 4: g(f"s_add_u32 m0, s{S_MX}, 4096"); g("s_nop 0")
            v = V_XD[2 * (ii >> 2) + (ii & 1)] if o.only != "w" else V_ZERO
            g(ld(v, xs, "0" if (ii & 3) == 0 else f"s{S_XO[ii & 3]}", (ii & 3) * 1024, o.xfl))
        g(f"s_add_u32 s{S_XS}, s{S_XS}, 128")
        g(f"s_addc_u32 s{S_XS+1}, s{S_XS+1}, 0")
        g(f"s_xor_b32 s{S_MX}, s{S_MX}, {XSLOT}")
        if o.rot:
            g(f"s_add_u32 s{S_KX}, s{S_KX}, 1")
            g(f"s_cmp_eq_u32 s{S_KX}, 16")
            g(f"s_cselect_b32 s{S_T+1}, 2048, 0")
            g(f"s_sub_u32 s{S_XS}, s{S_XS}, s{S_T+1}")
            g(f"s_subb_u32 s{S_XS+1}, s{S_XS+1}, 0")
    def w_stage():
        for j in range(6):
            if j == 0: g(f"s_mov_b32 m0, s{S_MW}"); g("s_nop 0")
            if j == 4: g(f"s_add_u32 m0, s{S_MW}, 4096"); g("s_nop 0")
            g(ld(V_WD if o.only != "x" else V_ZERO, ws, f"s{S_WO[j]}", (j % 4) * 1024, o.wfl))
        g(f"s_add_u32 s{S_WS}, s{S_WS}, 65536")
        g(f"s_addc_u32 s{S_WS+1}, s{S_WS+1}, 0")
        g(f"s_add_u32 s{S_MW}, s{S_MW}, {WSLOT}")
        g(f"s_cmp_eq_u32 s{S_MW}, s{S_WLIM}")
        g(f"s_cselect_b32 s{S_T+1}, {4*WSLOT}, 0")
        g(f"s_sub_u32 s{S_MW}, s{S_MW}, s{S_T+1}")
        if o.rot:
            g(f"s_add_u32 s{S_KW}, s{S_KW}, 1")
            g(f"s_cmp_eq_u32 s{S_KW}, 32")
            g(f"s_cselect_b32 s{S_T+1}, 2097152, 0")
            g(f"s_sub_u32 s{S_WS}, s{S_WS}, s{S_T+1}")
            g(f"s_subb_u32 s{S_WS+1}, s{S_WS+1}, 0")
    w_stage(); x_chunk(); w_stage(); x_chunk(); w_stage(); w_stage()
    npf = 0
    if o.pf:
        g(f"s_mov_b32 s{S_PS}, s4"); g(f"s_mov_b32 s{S_PS+1}, s5"); g(f"s_mov_b32 s{S_PS+2}, 16777216")
        g(f"s_mov_b32 s{S_OS}, s6"); g(f"s_mov_b32 s{S_OS+1}, s7"); g(f"s_mov_b32 s{S_OS+2}, 6291456")
        g(f"s_and_b32 s{S_T+1}, s{S_B0}, 0xfff80000")
        g(f"s_bfe_u32 s{S_T+2}, s{S_N0}, 0x30008")
        g(f"s_lshl_b32 s{S_T+2}, s{S_T+2}, 16")
        g(f"s_add_u32 s{S_T+1}, s{S_T+1}, s{S_T+2}")
        g(f"s_lshl_b32 s{S_T+2}, s{S_T}, 14")
        g(f"s_add_u32 s{S_T+1}, s{S_T+1}, s{S_T+2}")
        g(f"v_lshlrev_b32 v20, 7, v0")
        for i in range(2):
            g(f"buffer_load_dword v{21+i}, v20, s[{S_PS}:{S_PS+3}], s{S_T+1} offen{o.pffl}")
            g(f"s_add_u32 s{S_T+1}, s{S_T+1}, 8192")
            npf += 1
        g(f"s_mul_i32 s{S_T+1}, s2, 24576")
        g(f"s_lshl_b32 s{S_T+2}, s{S_T}, 13")
        g(f"s_add_u32 s{S_T+1}, s{S_T+1}, s{S_T+2}")
        g(f"s_cmp_eq_u32 s{S_T}, 3")
        g(f"s_cselect_b32 s{S_OS+2}, 0, s{S_OS+2}")
        g(f"buffer_load_dword v23, v20, s[{S_OS}:{S_OS+3}], s{S_T+1} offen{o.pffl}")
        npf += 1
    g(f"s_waitcnt vmcnt({26 + npf})")
    g("s_barrier")
    g(f"s_mov_b32 s{S_CNT}, 4")
    if npf:
        pass
    g.label("L_ld_loop")
    g(f"s_cmp_lt_u32 s{S_CNT}, 32")
    g(f"s_cselect_b32 s{S_XS+2}, s{S_XN}, 0")
    g(f"s_cselect_b32 s{S_WS+2}, s{S_WN}, 0")
    def lstamp(k):
        if o.stamp:
            g("s_memrealtime s[80:81]")
            g("s_memtime s[82:83]")
            g(f"s_add_u32 m0, s{S_CNT}, {k - 4}")
            g("s_waitcnt lgkmcnt(0)")
            g("v_writelane_b32 v30, s80, m0")
            g("v_writelane_b32 v31, s82, m0")
    g("s_waitcnt vmcnt(20)")
    g("s_barrier")
    if not o.nodma: w_stage()
    lstamp(0)
    g("s_waitcnt vmcnt(12)")
    g("s_barrier")
    if not o.nodma: x_chunk(); w_stage()
    lstamp(1)
    g(f"s_add_u32 s{S_CNT}, s{S_CNT}, 2")
    g(f"s_cmp_lt_u32 s{S_CNT}, 36")
    g("s_cbranch_scc1 L_ld_loop")
    if o.stamp:
        g(f"s_lshl_b32 s{S_T+1}, s2, 2")
        g(f"s_add_u32 s{S_T+1}, s{S_T+1}, s{S_T}")
        g(f"s_lshl_b32 s{S_T+1}, s{S_T+1}, 8")
        g(f"s_add_u32 s{S_T+1}, s{S_T+1}, 65536")
        g(f"s_mov_b32 s{S_PS}, s54")
        g(f"s_mov_b32 s{S_PS+1}, s55")
        g(f"s_mov_b32 s{S_PS+2}, 0x100000")
        g(f"v_lshlrev_b32 v29, 2, v0")
        g("s_mov_b64 exec, 0xffffffff")
        g(f"buffer_store_dword v30, v29, s[{S_PS}:{S_PS+3}], s{S_T+1} offen")
        g(f"buffer_store_dword v31, v29, s[{S_PS}:{S_PS+3}], s{S_T+1} offen offset:128")
    g("s_endpgm")

    g.label("L_consumer")
    g(f"s_mov_b32 s{S_PS+2}, 2048")
    g(f"v_lshrrev_b32 v{V_T}, 4, v0")
    g(f"v_lshlrev_b32 v{V_T}, 3, v{V_T}")
    g(f"s_lshl_b32 s{S_T+1}, s{S_T}, 6")
    g(f"s_add_u32 s{S_T+1}, s{S_T+1}, s{S_N0}")
    g(f"v_add_u32 v{V_T}, s{S_T+1}, v{V_T}")
    g("s_waitcnt lgkmcnt(0)")
    V_RAW = V_XB
    nraw = NBN // 2
    for pi in range(4):
        g(f"s_mov_b32 s{S_PS}, s{44+2*pi}")
        g(f"s_mov_b32 s{S_PS+1}, s{45+2*pi}")
        for d in range(2):
            g(f"buffer_load_dwordx2 {vr(V_RAW+pi*nraw+2*d,2)}, v{V_T}, s[{S_PS}:{S_PS+3}], 0 offen offset:{32*d}")
    g(f"v_and_b32 v{V_T}, 15, v0")
    g(f"v_lshrrev_b32 v{V_T+1}, 1, v{V_T}")
    g(f"v_lshrrev_b32 v{V_T+2}, 4, v0")
    g(f"v_xor_b32 v{V_T+1}, v{V_T+1}, v{V_T+2}")
    g(f"v_lshlrev_b32 v{V_T+1}, 4, v{V_T+1}")
    g(f"v_lshl_add_u32 v{V_XA[0]}, v{V_T}, 7, v{V_T+1}")
    g(f"v_xor_b32 v{V_XA[1]}, 64, v{V_XA[0]}")
    g(f"v_bfe_u32 v{V_T}, v0, 2, 2")
    g(f"v_xor_b32 v{V_T+1}, s{S_T}, v{V_T}")
    g(f"v_lshlrev_b32 v{V_T+1}, 6, v{V_T+1}")
    g(f"v_lshl_add_u32 v{V_T+1}, v{V_T}, 8, v{V_T+1}")
    g(f"v_mul_u32_u24 v{V_T+3}, {WREG}, v{V_T+2}")
    g(f"v_add_u32 v{V_T+1}, v{V_T+1}, v{V_T+3}")
    g(f"v_and_b32 v{V_T+2}, 1, v{V_T+2}")
    g(f"v_lshl_add_u32 v{V_T+1}, v{V_T+2}, 5, v{V_T+1}")
    g(f"v_and_b32 v{V_T+2}, 3, v0")
    g(f"v_lshl_add_u32 v{V_T+1}, v{V_T+2}, 3, v{V_T+1}")
    g(f"v_add_u32 v{V_WA[0]}, {WBASE}, v{V_T+1}")
    g(f"v_xor_b32 v{V_WA[1]}, 32, v{V_WA[0]}")
    g(f"s_add_u32 s{S_T+1}, s{S_B0}, s{S_N0}")
    g(f"s_add_u32 s{S_OS}, s52, s{S_T+1}")
    g(f"s_addc_u32 s{S_OS+1}, s53, 0")
    g(f"s_sub_u32 s{S_OS+2}, 16777216, s{S_T+1}")
    g(f"v_and_b32 v{V_T}, 15, v0")
    g(f"v_lshlrev_b32 v{V_T}, 14, v{V_T}")
    g(f"v_bfe_u32 v{V_T+1}, v0, 4, 1")
    g(f"v_lshl_add_u32 v{V_T}, v{V_T+1}, 5, v{V_T}")
    g(f"v_lshrrev_b32 v{V_T+1}, 5, v0")
    g(f"v_lshl_add_u32 v{V_T}, v{V_T+1}, 4, v{V_T}")
    g(f"s_lshl_b32 s{S_T+1}, s{S_T}, 6")
    g(f"v_add_u32 v{V_OUT}, s{S_T+1}, v{V_T}")
    for i in range(128):
        g(f"v_accvgpr_write_b32 a{i}, 0" if o.agpr else f"v_mov_b32 v{V_ACC+i}, 0")
    g("s_waitcnt vmcnt(0)")
    M_, V_, G_, B_ = (V_RAW + i * nraw for i in range(4))
    TA, TB = V_WB[1], V_WB[1] + 1
    g(f"s_mov_b32 s{S_T+1}, 0x3727c5ac")
    def unpack(dst, src, hi):
        if hi: g(f"v_and_b32 v{dst}, 0xffff0000, v{src}")
        else:  g(f"v_lshlrev_b32 v{dst}, 16, v{src}")
    for k in range(nraw):
        lo, hi = V_SC + 2 * k, V_SC + 2 * k + 1
        unpack(lo, V_ + k, 0); unpack(hi, V_ + k, 1)
        g(f"v_add_f32 v{lo}, s{S_T+1}, v{lo}")
        g(f"v_add_f32 v{hi}, s{S_T+1}, v{hi}")
        g(f"v_cvt_pk_bf16_f32 v{TA}, v{lo}, v{hi}")
        unpack(lo, TA, 0); unpack(hi, TA, 1)
        g(f"v_sqrt_f32 v{lo}, v{lo}")
        g(f"v_sqrt_f32 v{hi}, v{hi}")
        g("s_nop 0")
        g(f"v_cvt_pk_bf16_f32 v{TA}, v{lo}, v{hi}")
        unpack(lo, TA, 0); unpack(hi, TA, 1)
        g(f"v_rcp_f32 v{lo}, v{lo}")
        g(f"v_rcp_f32 v{hi}, v{hi}")
        g("s_nop 0")
        g(f"v_cvt_pk_bf16_f32 v{TA}, v{lo}, v{hi}")
        unpack(lo, TA, 0); unpack(hi, TA, 1)
        unpack(TA, G_ + k, 0); unpack(TB, G_ + k, 1)
        g(f"v_mul_f32 v{lo}, v{lo}, v{TA}")
        g(f"v_mul_f32 v{hi}, v{hi}, v{TB}")
        g(f"v_cvt_pk_bf16_f32 v{TA}, v{lo}, v{hi}")
        unpack(lo, TA, 0); unpack(hi, TA, 1)
        slo, shi = V_SH + 2 * k, V_SH + 2 * k + 1
        unpack(slo, B_ + k, 0); unpack(shi, B_ + k, 1)
        unpack(TA, M_ + k, 0); unpack(TB, M_ + k, 1)
        g(f"v_fma_f32 v{slo}, -v{TA}, v{lo}, v{slo}")
        g(f"v_fma_f32 v{shi}, -v{TB}, v{hi}, v{shi}")

    def xread(p, f):
        s, q = f >> 1, f & 1
        buf = V_XB + (f % NXB) * 4
        return f"ds_read_b128 {vr(buf,4)}, v{V_XA[p]} offset:{s * 4096 + q * 2048}"
    def wread(p, t, d, h):
        dst = wfrag(p, t, d) + 2 * h
        return f"ds_read_b64_tr_b16 {vr(dst,2)}, v{V_WA[d]} offset:{p * WSLOT + t*2048 + h*1024}"
    def group_mfmas(p, f):
        s, q = f >> 1, f & 1
        buf = V_XB + (f % NXB) * 4
        out = []
        for t in range(3):
            sp = s - t + 1
            if not 0 <= sp <= 7: continue
            for d in range(2):
                a = acc(sp, q, d)
                out.append((f"v_mfma_f32_16x16x32_bf16 {vr(a,4)}, {vr(wfrag(p,t,d),4)}, {vr(buf,4)}, {vr(a,4)}",
                            [("x", f), ("w", t, d, 0), ("w", t, d, 1)]))
        return out
    worder = [(t, d, h) for t in range(3) for d in range(2) for h in range(2)]

    def stage_stream(p):
        items = []
        groups = [group_mfmas(p, f) for f in range(16)]
        nm = sum(len(x) for x in groups)
        fill = [[] for _ in range(nm)]
        start = [sum(len(x) for x in groups[:f]) for f in range(17)]
        fb = 16 - L
        for f in range(16):
            if f + L < 16:
                fill[start[f]].append(("l", xread(p, f + L), ("x", f + L, 0)))
        ib = start[fb + 1] - 1
        fill[ib].append(("bar",))
        fill[ib].append(("l", xread(1 - p, 0), ("x", 0, 1)))
        taken = set()
        for f in range(fb + 1, 16):
            fill[start[f]].append(("l", xread(1 - p, f + L - 16), ("x", f + L - 16, 1)))
            taken.add(start[f])
        free = [i for i in range(ib + 1, nm) if i not in taken]
        for k, w_ in enumerate(worder):
            fill[free[min(k // o.wper, len(free) - 1)]].append(("l", wread(1 - p, *w_), ("w",) + w_ + (1,)))
        fill[start[15 - L] + 1].append(("i", f"v_xor_b32 v{V_XA[p]}, {XSLOT}, v{V_XA[p]}"))
        if p == 1:
            fill[1].append(("i", f"v_add_u32 v{V_WA[0]}, s{S_DELTA}, v{V_WA[0]}"))
            fill[2].append(("i", f"v_add_u32 v{V_WA[1]}, s{S_DELTA}, v{V_WA[1]}"))
            fill[nm - 4].append(("i", f"s_sub_u32 s{S_DELTA}, 0, s{S_DELTA}"))
            fill[nm - 3].append(("i", f"s_add_u32 s{S_CNT}, s{S_CNT}, 2"))
            fill[nm - 2].append(("i", f"s_cmp_lt_u32 s{S_CNT}, 32"))
        i = 0
        for f in range(16):
            for (txt, needs) in groups[f]:
                items.append(("m", txt, needs))
                items += fill[i]
                i += 1
        return items

    streams = [stage_stream(0), stage_stream(1)]
    def place_waits():
        seq = []; done = -1; out = None
        for it in range(3):
            cur = []
            for p in range(2):
                st = 2 * it + p
                for item in streams[p]:
                    if item[0] == "m":
                        need = -1
                        for n_ in item[2]:
                            key = n_ + (st,)
                            idx = [i for i, t_ in enumerate(seq) if t_ == key]
                            if idx: need = max(need, idx[-1])
                            else: assert st == 0, key
                        if need > done:
                            cnt = min(len(seq) - 1 - need, 15)
                            cur.append(f"s_waitcnt lgkmcnt({cnt})")
                            done = len(seq) - 1 - cnt
                        cur.append(item[1])
                    elif item[0] == "l":
                        tag = item[2]
                        seq.append(tag[:-1] + (st + tag[-1],))
                        cur.append(item[1])
                    elif item[0] == "bar":
                        cur.append("s_waitcnt lgkmcnt(0)")
                        cur.append("s_barrier")
                        done = len(seq) - 1
                    else:
                        cur.append(item[1])
            if it == 2: assert cur == out
            out = cur
        return out
    body = place_waits()
    if o.nolds:
        body = [b for b in body if not (b.startswith("ds_read") or b.startswith("s_waitcnt lgkmcnt"))]
    if o.keep < 0:
        body = [b for b in body if not b.startswith("v_mfma")]

    if o.agpr:
        import re
        def ren(b):
            if not b.startswith("v_mfma"): return b
            return re.sub(r"v\[(\d+):(\d+)\]", lambda m: f"a[{int(m.group(1))-128}:{int(m.group(2))-128}]" if int(m.group(1)) >= 128 else m.group(0), b)
        body = [ren(b) for b in body]
    g("s_barrier")
    if o.stamp:
        g(f"s_memtime s[{S_STAMP+4}:{S_STAMP+5}]")
        g(f"s_memrealtime s[{S_STAMP+14}:{S_STAMP+15}]")
        g("s_waitcnt lgkmcnt(0)")
    for w_ in worder: g(wread(0, *w_))
    for f in range(L): g(xread(0, f))
    g(f"s_mov_b32 s{S_DELTA}, {2*WSLOT}")
    g(f"s_mov_b32 s{S_CNT}, 0")
    g("s_waitcnt lgkmcnt(0)")
    g.raw(".p2align 6")
    g.label("L_loop")
    for s_ in body: g(s_)
    g("s_cbranch_scc1 L_loop")
    if o.stamp:
        g(f"s_memtime s[{S_STAMP+6}:{S_STAMP+7}]")
        g(f"s_memrealtime s[{S_STAMP+16}:{S_STAMP+17}]")
    g("s_nop 15")
    g(f"s_mov_b32 s{S_T+2}, 0xbfb8aa3b")
    ui = 0
    for sp in range(8):
        for bg in range(2):
            regs = [(acc(sp, bg, d) + j, d * 4 + j) for d in range(2) for j in range(4)]
            soff = (bg * 128 + sp) * 2048
            n = len(regs)
            E = V_WB[0] + (ui % 2) * 16
            P = V_XB + (ui % 4) * 8
            if o.agpr:
                nregs = []
                for i, (a, k) in enumerate(regs):
                    g(f"v_accvgpr_read_b32 v{112+i}, a{a-128}")
                    nregs.append((112 + i, k))
                regs = nregs
            for (a, k) in regs: g(f"v_fma_f32 v{a}, v{a}, v{V_SC+k}, v{V_SH+k}")
            for i, (a, k) in enumerate(regs): g(f"v_mul_f32 v{E+i}, s{S_T+2}, v{a}")
            for i in range(n): g(f"v_exp_f32 v{E+i}, v{E+i}")
            for i in range(n): g(f"v_add_f32 v{E+i}, 1.0, v{E+i}")
            for i in range(n): g(f"v_rcp_f32 v{E+i}, v{E+i}")
            for i, (a, k) in enumerate(regs): g(f"v_mul_f32 v{a}, v{a}, v{E+i}")
            for i in range(4):
                g(f"v_cvt_pk_bf16_f32 v{P+i}, v{regs[2*i][0]}, v{regs[2*i+1][0]}")
            g(f"s_mov_b32 s{S_T+3}, {soff}")
            g("s_nop 0")
            g(f"v_permlane16_swap_b32 v{P}, v{P+2}")
            g(f"v_permlane16_swap_b32 v{P+1}, v{P+3}")
            g(f"buffer_store_dwordx4 {vr(P,4)}, v{V_OUT}, s[{S_OS}:{S_OS+3}], s{S_T+3} offen{o.stflags}")
            ui += 1
    if o.stamp:
        g(f"s_memtime s[{S_STAMP+8}:{S_STAMP+9}]")
        g("s_waitcnt vmcnt(0)")
        g(f"s_memtime s[{S_STAMP+10}:{S_STAMP+11}]")
        g(f"s_memrealtime s[{S_STAMP+12}:{S_STAMP+13}]")
        g("s_waitcnt lgkmcnt(0)")
        g(f"s_lshl_b32 s{S_T+1}, s2, 2")
        g(f"s_add_u32 s{S_T+1}, s{S_T+1}, s{S_T}")
        g(f"s_lshl_b32 s{S_T+1}, s{S_T+1}, 6")
        g(f"s_mov_b32 s{S_PS}, s54")
        g(f"s_mov_b32 s{S_PS+1}, s55")
        g(f"s_mov_b32 s{S_PS+2}, 0x100000")
        g(f"v_mov_b32 v{V_T}, s{S_T+1}")
        for i in range(14):
            g(f"v_mov_b32 v{V_WB[0]+i}, s{S_STAMP+i}")
        g(f"v_mov_b32 v{V_WB[0]+14}, s{S_STAMP+14}")
        g(f"v_mov_b32 v{V_WB[0]+15}, s{S_STAMP+16}")
        g("s_mov_b64 exec, 1")
        for i in range(4):
            g(f"buffer_store_dwordx4 {vr(V_WB[0]+4*i,4)}, v{V_T}, s[{S_PS}:{S_PS+3}], 0 offen offset:{16*i}")
    g.label("L_end")
    g("s_endpgm")
    g.raw('.section .rodata,"a"')
    g.raw(".p2align 6")
    g.raw(f".amdhsa_kernel {KN}")
    g.raw("  .amdhsa_next_free_vgpr 256")
    g.raw("  .amdhsa_next_free_sgpr 96")
    g.raw("  .amdhsa_accum_offset %d" % (128 if o.agpr else 256))
    g.raw("  .amdhsa_group_segment_fixed_size 0")
    g.raw("  .amdhsa_kernarg_size 72")
    g.raw("  .amdhsa_user_sgpr_count 2")
    g.raw("  .amdhsa_user_sgpr_kernarg_segment_ptr 1")
    g.raw("  .amdhsa_system_sgpr_workgroup_id_x 1")
    g.raw(".end_amdhsa_kernel")
    return g.text()

if __name__ == "__main__":
    ap = argparse.ArgumentParser()
    ap.add_argument("--lead", type=int, default=6)
    ap.add_argument("--wper", type=int, default=1)
    ap.add_argument("--stflags", default="")
    ap.add_argument("--xfl", default="")
    ap.add_argument("--wfl", default="")
    ap.add_argument("--pffl", default="")
    ap.add_argument("--stamp", action="store_true")
    ap.add_argument("--nolds", action="store_true")
    ap.add_argument("--nodma", action="store_true")
    ap.add_argument("--keep", type=int, default=0)
    ap.add_argument("--only", default="")
    ap.add_argument("--rot", type=int, default=0)
    ap.add_argument("--rotsel", default="m")
    ap.add_argument("--map", default="8x4")
    ap.add_argument("--pf", action="store_true")
    ap.add_argument("--agpr", action="store_true")
    ap.add_argument("-o", default="-")
    o = ap.parse_args()
    for k in ("stflags", "xfl", "wfl", "pffl"):
        if getattr(o, k): setattr(o, k, " " + getattr(o, k))
    t = gen(o)
    if o.o == "-": sys.stdout.write(t)
    else: open(o.o, "w").write(t)
```

```python
import sys, argparse

HEADER = """; Kernarg layout for this problem (72 bytes, ptrs only, base s[0:1]):
"""
KN = "standalone__batchnorm__sampling_kernel"

SLOT = 40960
WREG = 10240

class G:
    def __init__(self):
        self.lines = []
    def __call__(self, s):
        self.lines.append("    " + s)
    def label(self, s):
        self.lines.append(s + ":")
    def raw(self, s):
        self.lines.append(s)
    def text(self):
        return "\n".join(self.lines) + "\n"

def vr(b, n):
    return f"v[{b}:{b+n-1}]" if n > 1 else f"v{b}"

def gen(o):
    g = G()
    S_MODE = o.mode == "S"
    nthreads = 512 if S_MODE else 256
    shape = o.shape
    L = o.lead
    NXB = 8
    V_XD, V_WD = 1, 2
    V_XA = [[3, 4], [5, 6]]
    V_WA = [[7, 8], [9, 10]]
    V_OUT = 11
    V_ZERO = 47
    V_T = 12
    V_SC, V_SH = 16, 32
    V_XB = 48
    V_WB = [80, 104]
    V_ACC = 128
    NBN = 8 if shape == 16 else 16
    S_XS, S_WS, S_OS = 8, 12, 16
    S_PS = 20
    S_WAVE, S_B0, S_N0 = 24, 25, 26
    S_M = [27, 28]
    S_DELTA, S_CNT = 29, 30
    S_XO1 = 31
    S_WO = [32, 33, 34, 35, 36, 37]
    S_XN, S_WN = 38, 39
    S_T = 40
    S_STAMP = 60

    def acc(sp, bg, d):
        if shape == 16:
            return V_ACC + ((sp * 2 + bg) * 2 + d) * 4
        return V_ACC + sp * 16
    def wfrag(p, t, d):
        return V_WB[p] + (t * 2 + d) * 4

    g.raw(HEADER + f"; @launch grid=(256,1,1) block=({nthreads},1,1) lds=163840")
    g.raw('.amdgcn_target "amdgcn-amd-amdhsa--gfx950"')
    g.raw(".text")
    g.raw(f".globl {KN}")
    g.raw(".p2align 8")
    g.raw(f".type {KN},@function")
    g.label(KN)
    g("s_cmp_ge_u32 s2, 256")
    g("s_cbranch_scc1 L_end")
    if o.stamp:
        g(f"s_memtime s[{S_STAMP}:{S_STAMP+1}]")
        g(f"s_memrealtime s[{S_STAMP+2}:{S_STAMP+3}]")
    g("s_load_dwordx4 s[4:7], s[0:1], 0")
    g("s_load_dwordx8 s[44:51], s[0:1], 16")
    g("s_load_dwordx2 s[52:53], s[0:1], 48")
    if o.stamp:
        g("s_load_dwordx2 s[54:55], s[0:1], 64")
    g("s_and_b32 s3, s2, 7")
    g(f"s_lshr_b32 s{S_T}, s2, 3")
    g(f"s_lshr_b32 s{S_B0}, s3, 1")
    g(f"s_lshl_b32 s{S_B0}, s{S_B0}, 3")
    g(f"s_lshr_b32 s{S_T+1}, s{S_T}, 2")
    g(f"s_add_u32 s{S_B0}, s{S_B0}, s{S_T+1}")
    g(f"s_lshl_b32 s{S_B0}, s{S_B0}, 19")
    g(f"s_and_b32 s{S_N0}, s3, 1")
    g(f"s_lshl_b32 s{S_N0}, s{S_N0}, 2")
    g(f"s_and_b32 s{S_T+1}, s{S_T}, 3")
    g(f"s_add_u32 s{S_N0}, s{S_N0}, s{S_T+1}")
    g(f"s_lshl_b32 s{S_N0}, s{S_N0}, 8")
    g(f"v_lshrrev_b32 v{V_T}, 6, v0")
    g("v_and_b32 v0, 63, v0")
    g(f"v_readfirstlane_b32 s{S_WAVE}, v{V_T}")
    g(f"v_lshrrev_b32 v{V_T}, 4, v0")
    g(f"v_sub_u32 v{V_T+1}, 0, v{V_T}")
    g(f"v_xor_b32 v{V_T+1}, v{V_T+1}, v0")
    g(f"v_and_b32 v{V_T+1}, 3, v{V_T+1}")
    g(f"v_lshlrev_b32 v{V_T+1}, 4, v{V_T+1}")
    g(f"v_lshrrev_b32 v{V_T+2}, 2, v0")
    g(f"v_lshl_add_u32 v{V_XD}, v{V_T+2}, 14, v{V_T+1}")
    g(f"s_and_b32 s{S_T}, s{S_WAVE}, 3")
    g(f"s_lshl_b32 s{S_T+1}, s{S_T}, 12")
    g(f"v_add_u32 v{V_XD}, s{S_T+1}, v{V_XD}")
    g(f"s_and_b32 s{S_T+2}, s{S_T}, 1")
    g(f"s_lshl_b32 s{S_T+2}, s{S_T+2}, 1")
    g(f"v_lshl_add_u32 v{V_T+1}, v{V_T}, 2, s{S_T+2}")
    g(f"v_xor_b32 v{V_T+1}, v{V_T+1}, v0")
    g(f"v_and_b32 v{V_T+1}, 15, v{V_T+1}")
    g(f"v_lshlrev_b32 v{V_T+1}, 4, v{V_T+1}")
    g(f"v_lshl_add_u32 v{V_WD}, v{V_T}, 11, v{V_T+1}")
    g(f"s_lshl_b32 s{S_T+1}, s{S_T}, 14")
    g(f"v_add_u32 v{V_WD}, s{S_T+1}, v{V_WD}")
    g(f"v_mov_b32 v{V_ZERO}, 0x7ff00000")
    g(f"s_mov_b32 s{S_XO1}, 261120")
    for j in range(6):
        t, qq = j >> 1, j & 1
        io = (j % 4) * 1024
        g(f"s_mov_b32 s{S_WO[j]}, {t * 2097152 + qq * 8192 - io}")
    g(f"s_mul_i32 s{S_M[1]}, s{S_T}, {WREG}")
    g(f"s_mov_b32 s{S_XS+3}, 0x20000")
    g(f"s_mov_b32 s{S_WS+3}, 0x20000")
    g(f"s_mov_b32 s{S_OS+3}, 0x20000")
    g(f"s_mov_b32 s{S_PS+3}, 0x20000")
    g(f"s_mov_b32 s{S_PS+2}, 2048")
    g(f"s_sub_u32 s{S_XN}, 16777216, s{S_B0}")
    g(f"s_sub_u32 s{S_WN}, 6291456, s{S_N0}")
    g("s_waitcnt lgkmcnt(0)")
    g(f"s_add_u32 s{S_XS}, s4, s{S_B0}")
    g(f"s_addc_u32 s{S_XS+1}, s5, 0")
    g(f"s_mov_b32 s{S_XS+2}, s{S_XN}")
    g(f"s_add_u32 s{S_WS}, s6, s{S_N0}")
    g(f"s_addc_u32 s{S_WS+1}, s7, 0")
    g(f"s_mov_b32 s{S_WS+2}, s{S_WN}")

    def dma_ops(m0reg):
        ops = []
        xs = f"s[{S_XS}:{S_XS+3}]"; ws = f"s[{S_WS}:{S_WS+3}]"
        def ld(v, srd, so, off):
            offs = f" offset:{off}" if off else ""
            return f"buffer_load_dwordx4 v{v}, {srd}, {so} offen{offs} lds"
        wl = [ld(V_WD, ws, f"s{S_WO[j]}", (j % 4) * 1024) for j in range(6)]
        xl = [ld(V_XD, xs, "0" if (i & 1) == 0 else f"s{S_XO1}", i * 1024) for i in range(4)]
        if o.only == "x": wl = [w_.replace(f"v{V_WD},", f"v{V_ZERO},").replace("offen", "offen") for w_ in wl]
        if o.only == "w": xl = [x_.replace(f"v{V_XD},", f"v{V_ZERO},") for x_ in xl]
        ops.append((f"s_add_u32 m0, s{m0reg}, 4096", wl[0]))
        ops += [(None, wl[1]), (None, wl[2]), (None, wl[3])]
        ops.append((f"s_add_u32 m0, s{m0reg}, 8192", wl[4]))
        ops.append((None, wl[5]))
        ops.append((f"s_mov_b32 m0, s{m0reg}", xl[0]))
        ops += [(None, xl[1]), (None, xl[2]), (None, xl[3])]
        return ops
    def srd_adv():
        return [f"s_add_u32 s{S_XS}, s{S_XS}, 64", f"s_addc_u32 s{S_XS+1}, s{S_XS+1}, 0",
                f"s_add_u32 s{S_WS}, s{S_WS}, 65536", f"s_addc_u32 s{S_WS+1}, s{S_WS+1}, 0"]
    def emit_dma_burst(m0reg):
        for m, d in dma_ops(m0reg):
            if m:
                g(m); g("s_nop 0")
            g(d)
        for s in srd_adv(): g(s)

    NPRE = 4 if S_MODE else 3
    if S_MODE:
        g(f"s_cmp_lt_u32 s{S_WAVE}, 4")
        g("s_cbranch_scc1 L_consumer")
        for st in range(4):
            emit_dma_burst(S_M[1])
            g(f"s_add_u32 s{S_M[1]}, s{S_M[1]}, {SLOT}")
        g(f"s_sub_u32 s{S_M[1]}, s{S_M[1]}, {4*SLOT}")
        g(f"s_add_u32 s{S_M[0]}, s{S_M[1]}, {4*SLOT}")
        g("s_waitcnt vmcnt(30)")
        g("s_barrier")
        g(f"s_mov_b32 s{S_CNT}, 4")
        g.label("L_ld_loop")
        g("s_waitcnt vmcnt(20)")
        g("s_barrier")
        g(f"s_cmp_lt_u32 s{S_CNT}, 32")
        g(f"s_cselect_b32 s{S_XS+2}, s{S_XN}, 0")
        g(f"s_cselect_b32 s{S_WS+2}, s{S_WN}, 0")
        if not o.nodma: emit_dma_burst(S_M[1])
        for k in range(o.lvalu):
            g(f"v_fma_f32 v{20 + k % 16}, v{40 + k % 8}, v{50 + k % 8}, v{60 + k % 8}")
        for k in range(o.ltrans):
            g(f"v_exp_f32 v{20 + k % 16}, v{40 + k % 8}")
        g(f"s_add_u32 s{S_M[1]}, s{S_M[1]}, {SLOT}")
        g(f"s_cmp_eq_u32 s{S_M[1]}, s{S_M[0]}")
        g(f"s_cselect_b32 s{S_T}, {4*SLOT}, 0")
        g(f"s_sub_u32 s{S_M[1]}, s{S_M[1]}, s{S_T}")
        g(f"s_add_u32 s{S_CNT}, s{S_CNT}, 1")
        g(f"s_cmp_lt_u32 s{S_CNT}, 36")
        g("s_cbranch_scc1 L_ld_loop")
        g("s_endpgm")
        g.label("L_consumer")

    if shape == 16:
        g(f"v_lshrrev_b32 v{V_T}, 4, v0")
        g(f"v_lshlrev_b32 v{V_T}, 3, v{V_T}")
    else:
        g(f"v_lshrrev_b32 v{V_T}, 5, v0")
        g(f"v_lshlrev_b32 v{V_T}, 4, v{V_T}")
    g(f"s_lshl_b32 s{S_T+1}, s{S_T}, 6")
    g(f"s_add_u32 s{S_T+1}, s{S_T+1}, s{S_N0}")
    g(f"v_add_u32 v{V_T}, s{S_T+1}, v{V_T}")
    V_RAW = V_XB
    nraw = NBN // 2
    npl = 0
    for pi in range(4):
        g(f"s_mov_b32 s{S_PS}, s{44+2*pi}")
        g(f"s_mov_b32 s{S_PS+1}, s{45+2*pi}")
        for d in range(2):
            if shape == 16:
                g(f"buffer_load_dwordx2 {vr(V_RAW+pi*nraw+2*d,2)}, v{V_T}, s[{S_PS}:{S_PS+3}], 0 offen offset:{32*d}")
            else:
                g(f"buffer_load_dwordx4 {vr(V_RAW+pi*nraw+4*d,4)}, v{V_T}, s[{S_PS}:{S_PS+3}], 0 offen offset:{32*d}")
            npl += 1
    if not S_MODE:
        for st in range(3):
            emit_dma_burst(S_M[1])
            g(f"s_add_u32 s{S_M[1]}, s{S_M[1]}, {SLOT}")
        g(f"s_mov_b32 s{S_M[0]}, s{S_M[1]}")
        g(f"s_sub_u32 s{S_M[1]}, s{S_M[1]}, {3*SLOT}")
    if shape == 16:
        g(f"v_and_b32 v{V_T}, 15, v0")
        g(f"v_lshrrev_b32 v{V_T+1}, 2, v{V_T}")
        g(f"v_sub_u32 v{V_T+1}, 0, v{V_T+1}")
        g(f"v_lshrrev_b32 v{V_T+2}, 4, v0")
        g(f"v_xor_b32 v{V_T+1}, v{V_T+1}, v{V_T+2}")
        g(f"v_and_b32 v{V_T+1}, 3, v{V_T+1}")
        g(f"v_lshlrev_b32 v{V_T+1}, 4, v{V_T+1}")
        g(f"v_lshl_add_u32 v{V_XA[0][0]}, v{V_T}, 6, v{V_T+1}")
        g(f"v_add_u32 v{V_XA[1][0]}, {SLOT}, v{V_XA[0][0]}")
        g(f"v_bfe_u32 v{V_T}, v0, 2, 2")
        g(f"v_xor_b32 v{V_T+1}, s{S_T}, v{V_T}")
        g(f"v_lshlrev_b32 v{V_T+1}, 6, v{V_T+1}")
        g(f"v_lshl_add_u32 v{V_T+1}, v{V_T}, 8, v{V_T+1}")
        g(f"v_mul_u32_u24 v{V_T+3}, {WREG}, v{V_T+2}")
        g(f"v_add_u32 v{V_T+1}, v{V_T+1}, v{V_T+3}")
        g(f"v_and_b32 v{V_T+2}, 1, v{V_T+2}")
        g(f"v_lshl_add_u32 v{V_T+1}, v{V_T+2}, 5, v{V_T+1}")
        g(f"v_and_b32 v{V_T+2}, 3, v0")
        g(f"v_lshl_add_u32 v{V_T+1}, v{V_T+2}, 3, v{V_T+1}")
        g(f"v_add_u32 v{V_WA[0][0]}, 4096, v{V_T+1}")
        g(f"v_xor_b32 v{V_WA[0][1]}, 32, v{V_WA[0][0]}")
        g(f"v_add_u32 v{V_WA[1][0]}, {SLOT}, v{V_WA[0][0]}")
        g(f"v_add_u32 v{V_WA[1][1]}, {SLOT}, v{V_WA[0][1]}")
        addr_regs = [[V_XA[p][0], V_WA[p][0], V_WA[p][1]] for p in range(2)]
    else:
        g(f"v_and_b32 v{V_T}, 15, v0")
        g(f"v_lshrrev_b32 v{V_T+1}, 2, v{V_T}")
        g(f"v_sub_u32 v{V_T+1}, 0, v{V_T+1}")
        g(f"v_lshrrev_b32 v{V_T+2}, 5, v0")
        g(f"v_xor_b32 v{V_T+1}, v{V_T+1}, v{V_T+2}")
        g(f"v_and_b32 v{V_T+1}, 3, v{V_T+1}")
        g(f"v_lshlrev_b32 v{V_T+1}, 4, v{V_T+1}")
        g(f"v_lshl_add_u32 v{V_T+1}, v{V_T}, 6, v{V_T+1}")
        g(f"v_bfe_u32 v{V_T+3}, v0, 4, 1")
        g(f"v_lshl_add_u32 v{V_XA[0][0]}, v{V_T+3}, 10, v{V_T+1}")
        g(f"v_xor_b32 v{V_XA[0][1]}, 32, v{V_XA[0][0]}")
        g(f"v_add_u32 v{V_XA[1][0]}, {SLOT}, v{V_XA[0][0]}")
        g(f"v_add_u32 v{V_XA[1][1]}, {SLOT}, v{V_XA[0][1]}")
        g(f"v_bfe_u32 v{V_T}, v0, 2, 2")
        g(f"v_xor_b32 v{V_T+1}, s{S_T}, v{V_T}")
        g(f"v_lshlrev_b32 v{V_T+1}, 6, v{V_T+1}")
        g(f"v_lshl_add_u32 v{V_T+1}, v{V_T}, 8, v{V_T+1}")
        g(f"v_mul_u32_u24 v{V_T}, {WREG}, v{V_T+2}")
        g(f"v_add_u32 v{V_T+1}, v{V_T+1}, v{V_T}")
        g(f"v_xor_b32 v{V_T}, v{V_T+2}, v{V_T+3}")
        g(f"v_lshl_add_u32 v{V_T+1}, v{V_T}, 5, v{V_T+1}")
        g(f"v_and_b32 v{V_T}, 1, v0")
        g(f"v_lshl_add_u32 v{V_T+1}, v{V_T}, 4, v{V_T+1}")
        g(f"v_bfe_u32 v{V_T}, v0, 1, 1")
        g(f"v_lshl_add_u32 v{V_T+1}, v{V_T}, 3, v{V_T+1}")
        g(f"v_add_u32 v{V_WA[0][0]}, 4096, v{V_T+1}")
        g(f"v_add_u32 v{V_WA[1][0]}, {SLOT}, v{V_WA[0][0]}")
        addr_regs = [[V_XA[p][0], V_XA[p][1], V_WA[p][0]] for p in range(2)]
    g(f"s_add_u32 s{S_T+1}, s{S_B0}, s{S_N0}")
    g(f"s_add_u32 s{S_OS}, s52, s{S_T+1}")
    g(f"s_addc_u32 s{S_OS+1}, s53, 0")
    g(f"s_sub_u32 s{S_OS+2}, 16777216, s{S_T+1}")
    g(f"v_and_b32 v{V_T}, 15, v0")
    g(f"v_lshlrev_b32 v{V_T}, 14, v{V_T}")
    g(f"v_bfe_u32 v{V_T+1}, v0, 4, 1")
    g(f"v_lshl_add_u32 v{V_T}, v{V_T+1}, 5, v{V_T}")
    g(f"v_lshrrev_b32 v{V_T+1}, 5, v0")
    g(f"v_lshl_add_u32 v{V_T}, v{V_T+1}, 4, v{V_T}")
    g(f"s_lshl_b32 s{S_T+1}, s{S_T}, 6")
    g(f"v_add_u32 v{V_OUT}, s{S_T+1}, v{V_T}")
    for i in range(128):
        g(f"v_mov_b32 v{V_ACC+i}, 0")
    g(f"s_waitcnt vmcnt({0 if S_MODE else 30})")
    M_, V_, G_, B_ = (V_RAW + i * nraw for i in range(4))
    TA, TB = V_WB[1], V_WB[1] + 1
    g(f"s_mov_b32 s{S_T+1}, 0x3727c5ac")
    def unpack(dst, src, hi):
        if hi: g(f"v_and_b32 v{dst}, 0xffff0000, v{src}")
        else:  g(f"v_lshlrev_b32 v{dst}, 16, v{src}")
    for k in range(nraw):
        lo, hi = V_SC + 2 * k, V_SC + 2 * k + 1
        unpack(lo, V_ + k, 0); unpack(hi, V_ + k, 1)
        g(f"v_add_f32 v{lo}, s{S_T+1}, v{lo}")
        g(f"v_add_f32 v{hi}, s{S_T+1}, v{hi}")
        g(f"v_cvt_pk_bf16_f32 v{TA}, v{lo}, v{hi}")
        unpack(lo, TA, 0); unpack(hi, TA, 1)
        g(f"v_sqrt_f32 v{lo}, v{lo}")
        g(f"v_sqrt_f32 v{hi}, v{hi}")
        g("s_nop 0")
        g(f"v_cvt_pk_bf16_f32 v{TA}, v{lo}, v{hi}")
        unpack(lo, TA, 0); unpack(hi, TA, 1)
        g(f"v_rcp_f32 v{lo}, v{lo}")
        g(f"v_rcp_f32 v{hi}, v{hi}")
        g("s_nop 0")
        g(f"v_cvt_pk_bf16_f32 v{TA}, v{lo}, v{hi}")
        unpack(lo, TA, 0); unpack(hi, TA, 1)
        unpack(TA, G_ + k, 0); unpack(TB, G_ + k, 1)
        g(f"v_mul_f32 v{lo}, v{lo}, v{TA}")
        g(f"v_mul_f32 v{hi}, v{hi}, v{TB}")
        g(f"v_cvt_pk_bf16_f32 v{TA}, v{lo}, v{hi}")
        unpack(lo, TA, 0); unpack(hi, TA, 1)
        slo, shi = V_SH + 2 * k, V_SH + 2 * k + 1
        unpack(slo, B_ + k, 0); unpack(shi, B_ + k, 1)
        unpack(TA, M_ + k, 0); unpack(TB, M_ + k, 1)
        g(f"v_fma_f32 v{slo}, -v{TA}, v{lo}, v{slo}")
        g(f"v_fma_f32 v{shi}, -v{TB}, v{hi}, v{shi}")

    def xread(p, f):
        s, q = f >> 1, f & 1
        buf = V_XB + (f % NXB) * 4
        if shape == 16:
            off = (s >> 1) * WREG + (2 * (s & 1) + q) * 1024
            return f"ds_read_b128 {vr(buf,4)}, v{V_XA[p][0]} offset:{off}"
        off = (s >> 1) * WREG + 2 * (s & 1) * 1024
        return f"ds_read_b128 {vr(buf,4)}, v{V_XA[p][q]} offset:{off}"
    def wread(p, t, d, h):
        dst = wfrag(p, t, d) + 2 * h
        if shape == 16:
            return f"ds_read_b64_tr_b16 {vr(dst,2)}, v{V_WA[p][d]} offset:{t*2048 + h*1024}"
        return f"ds_read_b64_tr_b16 {vr(dst,2)}, v{V_WA[p][0]} offset:{d*2*WREG + t*2048 + h*1024}"
    def group_mfmas(p, f):
        s, q = f >> 1, f & 1
        buf = V_XB + (f % NXB) * 4
        out = []
        for t in range(3):
            sp = s - t + 1
            if not 0 <= sp <= 7: continue
            if shape == 16:
                for d in range(2):
                    a = acc(sp, q, d)
                    out.append((f"v_mfma_f32_16x16x32_bf16 {vr(a,4)}, {vr(wfrag(p,t,d),4)}, {vr(buf,4)}, {vr(a,4)}",
                                [("x", f), ("w", t, d, 0), ("w", t, d, 1)]))
            else:
                a = acc(sp, 0, 0)
                out.append((f"v_mfma_f32_32x32x16_bf16 {vr(a,16)}, {vr(wfrag(p,t,q),4)}, {vr(buf,4)}, {vr(a,16)}",
                            [("x", f), ("w", t, q, 0), ("w", t, q, 1)]))
        return out
    if shape == 16:
        worder = [(t, d, h) for t in range(3) for d in range(2) for h in range(2)]
    else:
        worder = [(t, d, h) for d in range(2) for t in range(2) for h in range(2)] + \
                 [(2, d, h) for d in range(2) for h in range(2)]

    def stage_stream(p):
        items = []
        groups = [group_mfmas(p, f) for f in range(16)]
        nm = sum(len(x) for x in groups)
        fill = [[] for _ in range(nm)]
        start = [sum(len(x) for x in groups[:f]) for f in range(17)]
        fb = 16 - L
        for f in range(16):
            if f + L < 16:
                fill[start[f]].append(("l", xread(p, f + L), ("x", f + L, 0)))
        ib = start[fb + 1] - 1
        fill[ib].append(("bar",))
        fill[ib].append(("l", xread(1 - p, 0), ("x", 0, 1)))
        taken = set()
        for f in range(fb + 1, 16):
            fill[start[f]].append(("l", xread(1 - p, f + L - 16), ("x", f + L - 16, 1)))
            taken.add(start[f])
        free = [i for i in range(ib + 1, nm) if i not in taken]
        per = o.wper
        k = 0
        for w_ in worder:
            i = free[min(k // per, len(free) - 1)]
            fill[i].append(("l", wread(1 - p, *w_), ("w",) + w_ + (1,)))
            k += 1
        irot = start[15 - L] + 1
        for j, r in enumerate(addr_regs[p]):
            fill[irot + j].append(("i", f"v_add_u32 v{r}, s{S_DELTA}, v{r}"))
        if not S_MODE:
            ops = dma_ops(S_M[p])
            i0 = o.dma0
            step = o.dmastep
            fill[0].append(("i", f"s_cmp_lt_u32 s{S_CNT}, {29 - p}"))
            fill[0].append(("i", f"s_cselect_b32 s{S_XS+2}, s{S_XN}, 0"))
            fill[1].append(("i", f"s_cselect_b32 s{S_WS+2}, s{S_WN}, 0"))
            for j, (m, d) in enumerate(ops):
                i = i0 + j * step
                assert i < ib, (i, ib)
                if m: fill[i - 1].append(("i", m))
                fill[i].append(("i", d))
            il = i0 + (len(ops) - 1) * step
            for j, s_ in enumerate(srd_adv()):
                fill[il + 1 + j // 2].append(("i", s_))
            fill[il + 3].append(("i", f"s_{'sub' if p == 0 else 'add'}_u32 s{S_M[p]}, s{S_M[p]}, s{S_DELTA}"))
        if p == 1:
            fill[nm - 4].append(("i", f"s_sub_u32 s{S_DELTA}, 0, s{S_DELTA}"))
            fill[nm - 3].append(("i", f"s_add_u32 s{S_CNT}, s{S_CNT}, 2"))
            fill[nm - 2].append(("i", f"s_cmp_lt_u32 s{S_CNT}, 32"))
        i = 0
        for f in range(16):
            for (txt, needs) in groups[f]:
                items.append(("m", txt, needs))
                items += fill[i]
                i += 1
        return items

    streams = [stage_stream(0), stage_stream(1)]
    def place_waits():
        seq = []
        done = -1
        out = None
        for it in range(3):
            cur = []
            for p in range(2):
                st = 2 * it + p
                for item in streams[p]:
                    if item[0] == "m":
                        need = -1
                        for n_ in item[2]:
                            key = n_ + (st,)
                            idx = [i for i, t_ in enumerate(seq) if t_ == key]
                            if idx: need = max(need, idx[-1])
                            else: assert st == 0, key
                        if need > done:
                            cnt = len(seq) - 1 - need
                            cnt = min(cnt, 15)
                            cur.append(f"s_waitcnt lgkmcnt({cnt})")
                            done = len(seq) - 1 - cnt
                        cur.append(item[1])
                    elif item[0] == "l":
                        tag = item[2]
                        seq.append(tag[:-1] + (st + tag[-1],))
                        cur.append(item[1])
                    elif item[0] == "bar":
                        cur.append("s_waitcnt lgkmcnt(0)" if S_MODE else "s_waitcnt vmcnt(20) lgkmcnt(0)")
                        cur.append("s_barrier")
                        done = len(seq) - 1
                    else:
                        cur.append(item[1])
            if it == 2: assert cur == out
            out = cur
        return out
    body = place_waits()
    if o.nolds:
        body = [b for b in body if not (b.startswith("ds_read") or b.startswith("s_waitcnt lgkmcnt"))]
    if o.nodma:
        body = [b for b in body if not b.startswith("buffer_load")]
    if o.nolds and o.order != "x":
        nb = []
        half = []
        ms = [b for b in body if b.startswith("v_mfma")]
        n = len(ms) // 2
        res = []
        for p in range(2):
            m = ms[p * n:(p + 1) * n]
            key = lambda t: t.split(",")[0]
            if o.order == "acc":
                m = sorted(m, key=lambda t: int(t.split("[")[1].split(":")[0]))
            elif o.order == "w":
                m = sorted(m, key=lambda t: int(t.split("[")[2].split(":")[0]))
            elif o.order == "swap":
                def sw(t):
                    a = t.split(", ")
                    return ", ".join([a[0], a[2], a[1], a[3]])
                m = [sw(t) for t in m]
            res += m
        it = iter(res)
        body = [next(it) if b.startswith("v_mfma") else b for b in body]
    if o.keep < 0:
        body = [b for b in body if not b.startswith("v_mfma")]
    if o.keep > 0:
        nb = []; i = 0
        for b in body:
            if b.startswith("v_mfma"):
                if i % 11 < o.keep: nb.append(b)
                elif o.fillnop >= 0: nb.append(f"s_nop {o.fillnop}")
                i += 1
            else: nb.append(b)
        body = nb
    if o.cblock:
        n_, op_ = o.cblock.split(":")
        nb = []
        for b in body:
            nb.append(b)
            if b == "s_barrier":
                for k in range(int(n_)):
                    a = 16 + (k % 8) * 2; x1 = V_XB + (k * 2) % 32; x2 = V_WB[0] + (k * 2 + 6) % 46
                    if op_ == "fma": nb.append(f"v_fma_f32 v{a}, v{x1}, v{x2}, v{x2+1}")
                    elif op_ == "mul": nb.append(f"v_mul_f32 v{a}, v{x1}, v{x2}")
                    elif op_ == "pk": nb.append(f"v_pk_fma_f32 v[{a}:{a+1}], v[{x1}:{x1+1}], v[{x2}:{x2+1}], v[{x1}:{x1+1}]")
                    elif op_ == "exp": nb.append(f"v_exp_f32 v{a}, v{x1}")
        body = nb
    if o.valu:
        nb = []; i = 0; k = 0
        nm = sum(b.startswith("v_mfma") for b in body)
        for b in body:
            nb.append(b)
            if b.startswith("v_mfma"):
                i += 1
                while k * nm < i * 2 * o.valu:
                    a = 16 + (k % 8) * 2; x1 = V_XB + (k * 2) % 32; x2 = V_WB[0] + (k * 2 + 6) % 48
                    if o.valuop == "add": nb.append(f"v_add_f32 v{a}, v{x1}, v{x2}")
                    elif o.valuop == "pk": nb.append(f"v_pk_add_f32 v[{a}:{a+1}], v[{x1}:{x1+1}], v[{x2}:{x2+1}]")
                    elif o.valuop == "cvt": nb.append(f"v_cvt_pk_bf16_f32 v{a}, v{x1}, v{x2}")
                    elif o.valuop == "and": nb.append(f"v_and_b32 v{a}, 0xffff0000, v{x1}")
                    elif o.valuop == "dot": nb.append(f"v_dot2_f32_bf16 v{a}, v{x1}, v{x2}, v{x2+1}")
                    k += 1
        body = nb

    if not S_MODE:
        g("s_waitcnt vmcnt(20)")
    g("s_barrier")
    if o.stamp:
        g(f"s_memtime s[{S_STAMP+4}:{S_STAMP+5}]")
        g(f"s_memrealtime s[{S_STAMP+14}:{S_STAMP+15}]")
        g("s_waitcnt lgkmcnt(0)")
    for w_ in worder: g(wread(0, *w_))
    for f in range(L): g(xread(0, f))
    if o.nolds:
        g("s_waitcnt lgkmcnt(0)")
        for w_ in worder: g(wread(1, *w_))
        g("s_waitcnt lgkmcnt(0)")
        for f in range(L, 8): g(xread(0, f))
    g(f"s_mov_b32 s{S_DELTA}, {2*SLOT}")
    g(f"s_mov_b32 s{S_CNT}, 0")
    g("s_waitcnt lgkmcnt(0)")
    g.raw(".p2align 6")
    g.label("L_loop")
    for s_ in body: g(s_)
    g("s_cbranch_scc1 L_loop")
    if o.stamp:
        g(f"s_memtime s[{S_STAMP+6}:{S_STAMP+7}]")
        g(f"s_memrealtime s[{S_STAMP+16}:{S_STAMP+17}]")
    g("s_nop 15")
    NL2E = "0xbfb8aa3b"
    g(f"s_mov_b32 s{S_T+2}, {NL2E}")
    P0 = V_XB
    def act(a, k, t):
        return
    units = []
    if shape == 16:
        for sp in range(8):
            for bg in range(2):
                regs = [(acc(sp, bg, d) + j, d * 4 + j) for d in range(2) for j in range(4)]
                units.append((regs, (bg * 128 + sp) * 2048))
    else:
        for sp in range(8):
            regs = [(acc(sp, 0, 0) + i, i) for i in range(16)]
            units.append((regs, sp * 2048))
    ui = 0
    for regs, soff in units:
        n = len(regs)
        E = V_WB[0] + (ui % 2) * 16
        P = V_XB + (ui % 4) * 8
        for (a, k) in regs:
            g(f"v_fma_f32 v{a}, v{a}, v{V_SC+k}, v{V_SH+k}")
        for i, (a, k) in enumerate(regs):
            g(f"v_mul_f32 v{E+i}, s{S_T+2}, v{a}")
        for i in range(n):
            g(f"v_exp_f32 v{E+i}, v{E+i}")
        for i in range(n):
            g(f"v_add_f32 v{E+i}, 1.0, v{E+i}")
        for i in range(n):
            g(f"v_rcp_f32 v{E+i}, v{E+i}")
        for i, (a, k) in enumerate(regs):
            g(f"v_mul_f32 v{a}, v{a}, v{E+i}")
        if shape == 16:
            for i in range(4):
                g(f"v_cvt_pk_bf16_f32 v{P+i}, v{regs[2*i][0]}, v{regs[2*i+1][0]}")
            g(f"s_mov_b32 s{S_T+3}, {soff}")
            g("s_nop 0")
            g(f"v_permlane16_swap_b32 v{P}, v{P+2}")
            g(f"v_permlane16_swap_b32 v{P+1}, v{P+3}")
            g(f"buffer_store_dwordx4 {vr(P,4)}, v{V_OUT}, s[{S_OS}:{S_OS+3}], s{S_T+3} offen{o.stflags}")
        else:
            for i in range(8):
                g(f"v_cvt_pk_bf16_f32 v{P+i}, v{regs[2*i][0]}, v{regs[2*i+1][0]}")
            g(f"s_mov_b32 s{S_T+3}, {soff}")
            g(f"s_mov_b32 s{S_T+4}, {soff + 128*2048}")
            for i in range(4):
                g(f"v_permlane16_swap_b32 v{P+i}, v{P+4+i}")
            g(f"buffer_store_dwordx4 {vr(P,4)}, v{V_OUT}, s[{S_OS}:{S_OS+3}], s{S_T+3} offen{o.stflags}")
            g(f"buffer_store_dwordx4 {vr(P+4,4)}, v{V_OUT}, s[{S_OS}:{S_OS+3}], s{S_T+4} offen{o.stflags}")
        ui += 1
    if o.stamp:
        g(f"s_memtime s[{S_STAMP+8}:{S_STAMP+9}]")
        g("s_waitcnt vmcnt(0)")
        g(f"s_memtime s[{S_STAMP+10}:{S_STAMP+11}]")
        g(f"s_memrealtime s[{S_STAMP+12}:{S_STAMP+13}]")
        g("s_waitcnt lgkmcnt(0)")
        g(f"s_lshl_b32 s{S_T+1}, s2, 2")
        g(f"s_add_u32 s{S_T+1}, s{S_T+1}, s{S_T}")
        g(f"s_lshl_b32 s{S_T+1}, s{S_T+1}, 6")
        g(f"s_mov_b32 s{S_PS}, s54")
        g(f"s_mov_b32 s{S_PS+1}, s55")
        g(f"s_mov_b32 s{S_PS+2}, 0x100000")
        g(f"v_mov_b32 v{V_T}, s{S_T+1}")
        for i in range(14):
            g(f"v_mov_b32 v{V_WB[0]+i}, s{S_STAMP+i}")
        g(f"v_mov_b32 v{V_WB[0]+14}, s{S_STAMP+14}")
        g(f"v_mov_b32 v{V_WB[0]+15}, s{S_STAMP+16}")
        g("s_mov_b64 exec, 1")
        for i in range(4):
            g(f"buffer_store_dwordx4 {vr(V_WB[0]+4*i,4)}, v{V_T}, s[{S_PS}:{S_PS+3}], 0 offen offset:{16*i}")
    g.label("L_end")
    g("s_endpgm")
    g.raw('.section .rodata,"a"')
    g.raw(".p2align 6")
    g.raw(f".amdhsa_kernel {KN}")
    g.raw("  .amdhsa_next_free_vgpr 256")
    g.raw("  .amdhsa_next_free_sgpr 96")
    g.raw("  .amdhsa_accum_offset 256")
    g.raw("  .amdhsa_group_segment_fixed_size 0")
    g.raw("  .amdhsa_kernarg_size 72")
    g.raw("  .amdhsa_user_sgpr_count 2")
    g.raw("  .amdhsa_user_sgpr_kernarg_segment_ptr 1")
    g.raw("  .amdhsa_system_sgpr_workgroup_id_x 1")
    g.raw(".end_amdhsa_kernel")
    return g.text()

if __name__ == "__main__":
    ap = argparse.ArgumentParser()
    ap.add_argument("--mode", default="U")
    ap.add_argument("--shape", type=int, default=16)
    ap.add_argument("--lead", type=int, default=6)
    ap.add_argument("--wper", type=int, default=1)
    ap.add_argument("--dma0", type=int, default=3)
    ap.add_argument("--dmastep", type=int, default=5)
    ap.add_argument("--stflags", default="")
    ap.add_argument("--stamp", action="store_true")
    ap.add_argument("--nolds", action="store_true")
    ap.add_argument("--nodma", action="store_true")
    ap.add_argument("--order", default="x")
    ap.add_argument("--valu", type=int, default=0)
    ap.add_argument("--valuop", default="add")
    ap.add_argument("--keep", type=int, default=0)
    ap.add_argument("--only", default="")
    ap.add_argument("--cblock", default="")
    ap.add_argument("--lvalu", type=int, default=0)
    ap.add_argument("--ltrans", type=int, default=0)
    ap.add_argument("--fillnop", type=int, default=-1)
    ap.add_argument("--rot", type=int, default=0)
    ap.add_argument("-o", default="-")
    o = ap.parse_args()
    if o.stflags: o.stflags = " " + o.stflags
    t = gen(o)
    if o.o == "-": sys.stdout.write(t)
    else: open(o.o, "w").write(t)
```

```python
import sys, argparse
from gen import HEADER, KN, G, vr

XSLOT = 32768
WBASE = 65536
WSLOT = 24576
WREG = 6144

def gen(o):
    g = G()
    L = o.lead
    NXB = 8
    V_XD = [1, 2, 3, 4]
    V_WD = 5
    V_XA = [6, 7]
    V_WA = [8, 9]
    V_OUT = 11
    V_T = 12
    V_SC, V_SH = 16, 32
    V_ZERO = 47
    V_XB = 48
    V_WB = [80, 104]
    V_ACC = 128
    NBN = 8
    S_XS, S_WS, S_OS, S_PS = 8, 12, 16, 20
    S_WAVE, S_B0, S_N0 = 24, 25, 26
    S_MX, S_MW = 27, 28
    S_DELTA, S_CNT = 29, 30
    S_XO = [None, 31, 56, 57]
    S_WO = [32, 33, 34, 35, 36, 37]
    S_XN, S_WN = 38, 39
    S_T = 40
    S_KX, S_KW, S_WLIM = 58, 59, 78
    S_STAMP = 60

    def acc(sp, bg, d): return V_ACC + ((sp * 2 + bg) * 2 + d) * 4
    def wfrag(p, t, d): return V_WB[p] + (t * 2 + d) * 4

    g.raw(HEADER + f"; @launch grid=(256,1,1) block=(512,1,1) lds=163840")
    g.raw('.amdgcn_target "amdgcn-amd-amdhsa--gfx950"')
    g.raw(".text")
    g.raw(f".globl {KN}")
    g.raw(".p2align 8")
    g.raw(f".type {KN},@function")
    g.label(KN)
    g("s_cmp_ge_u32 s2, 256")
    g("s_cbranch_scc1 L_end")
    if o.stamp:
        g(f"s_memtime s[{S_STAMP}:{S_STAMP+1}]")
        g(f"s_memrealtime s[{S_STAMP+2}:{S_STAMP+3}]")
    g("s_load_dwordx4 s[4:7], s[0:1], 0")
    g("s_load_dwordx8 s[44:51], s[0:1], 16")
    g("s_load_dwordx2 s[52:53], s[0:1], 48")
    if o.stamp:
        g("s_load_dwordx2 s[54:55], s[0:1], 64")
    g("s_and_b32 s3, s2, 7")
    g(f"s_lshr_b32 s{S_T}, s2, 3")
    if o.map == "8x4":
        g(f"s_lshr_b32 s{S_B0}, s3, 1")
        g(f"s_lshl_b32 s{S_B0}, s{S_B0}, 3")
        g(f"s_lshr_b32 s{S_T+1}, s{S_T}, 2")
        g(f"s_add_u32 s{S_B0}, s{S_B0}, s{S_T+1}")
        g(f"s_and_b32 s{S_N0}, s3, 1")
        g(f"s_lshl_b32 s{S_N0}, s{S_N0}, 2")
        g(f"s_and_b32 s{S_T+1}, s{S_T}, 3")
        g(f"s_add_u32 s{S_N0}, s{S_N0}, s{S_T+1}")
    elif o.map == "4x8":
        g(f"s_lshl_b32 s{S_B0}, s3, 2")
        g(f"s_lshr_b32 s{S_T+1}, s{S_T}, 3")
        g(f"s_add_u32 s{S_B0}, s{S_B0}, s{S_T+1}")
        g(f"s_and_b32 s{S_N0}, s{S_T}, 7")
    g(f"s_lshl_b32 s{S_B0}, s{S_B0}, 19")
    g(f"s_lshl_b32 s{S_N0}, s{S_N0}, 8")
    g(f"v_lshrrev_b32 v{V_T}, 6, v0")
    g("v_and_b32 v0, 63, v0")
    g(f"v_readfirstlane_b32 s{S_WAVE}, v{V_T}")
    g(f"s_mov_b32 s{S_XS+3}, 0x20000")
    g(f"s_mov_b32 s{S_WS+3}, 0x20000")
    g(f"s_mov_b32 s{S_OS+3}, 0x20000")
    g(f"s_mov_b32 s{S_PS+3}, 0x20000")
    g(f"s_and_b32 s{S_T}, s{S_WAVE}, 3")
    g(f"s_cmp_lt_u32 s{S_WAVE}, 4")
    g("s_cbranch_scc1 L_consumer")

    g(f"v_lshrrev_b32 v{V_T}, 4, v0")
    g(f"v_xor_b32 v{V_T+1}, v{V_T}, v0")
    g(f"v_and_b32 v{V_T+1}, 7, v{V_T+1}")
    g(f"v_lshlrev_b32 v{V_T+1}, 4, v{V_T+1}")
    g(f"v_lshrrev_b32 v{V_T+2}, 3, v0")
    g(f"v_lshl_add_u32 v{V_XD[0]}, v{V_T+2}, 14, v{V_T+1}")
    g(f"s_lshl_b32 s{S_T+1}, s{S_T}, 12")
    g(f"v_add_u32 v{V_XD[0]}, s{S_T+1}, v{V_XD[0]}")
    g(f"v_xor_b32 v{V_XD[1]}, 64, v{V_XD[0]}")
    g(f"v_add_u32 v{V_XD[2]}, 2048, v{V_XD[0]}")
    g(f"v_add_u32 v{V_XD[3]}, 2048, v{V_XD[1]}")
    g(f"s_and_b32 s{S_T+2}, s{S_T}, 1")
    g(f"s_lshl_b32 s{S_T+2}, s{S_T+2}, 1")
    g(f"v_lshl_add_u32 v{V_T+1}, v{V_T}, 2, s{S_T+2}")
    g(f"v_xor_b32 v{V_T+1}, v{V_T+1}, v0")
    g(f"v_and_b32 v{V_T+1}, 15, v{V_T+1}")
    g(f"v_lshlrev_b32 v{V_T+1}, 4, v{V_T+1}")
    g(f"v_lshl_add_u32 v{V_WD}, v{V_T}, 11, v{V_T+1}")
    g(f"s_lshl_b32 s{S_T+1}, s{S_T}, 14")
    g(f"v_add_u32 v{V_WD}, s{S_T+1}, v{V_WD}")
    if o.only: g(f"v_mov_b32 v{V_ZERO}, 0x7ff00000")
    for i in range(1, 4):
        g(f"s_mov_b32 s{S_XO[i]}, {i * (131072 - 1024)}")
    for j in range(6):
        t, qq = j >> 1, j & 1
        g(f"s_mov_b32 s{S_WO[j]}, {t * 2097152 + qq * 8192 - (j % 4) * 1024}")
    g(f"s_lshl_b32 s{S_MX}, s{S_T}, 13")
    g(f"s_mul_i32 s{S_MW}, s{S_T}, {WREG}")
    g(f"s_add_u32 s{S_MW}, s{S_MW}, {WBASE}")
    g(f"s_add_u32 s{S_WLIM}, s{S_MW}, {4*WSLOT}")
    g(f"s_sub_u32 s{S_XN}, 16777216, s{S_B0}")
    g(f"s_sub_u32 s{S_WN}, 6291456, s{S_N0}")
    if o.rot:
        if o.rotsel == "m": g(f"s_lshr_b32 s{S_KX}, s3, 1")
        elif o.rotsel == "xcd": g(f"s_mov_b32 s{S_KX}, s3")
        elif o.rotsel == "n": g(f"s_and_b32 s{S_KX}, s3, 1")
        g(f"s_mul_i32 s{S_KX}, s{S_KX}, {o.rot}")
        g(f"s_and_b32 s{S_KX}, s{S_KX}, 15")
        g(f"s_lshl_b32 s{S_KW}, s{S_KX}, 1")
        g(f"s_lshl_b32 s{S_T+1}, s{S_KX}, 7")
        g(f"s_add_u32 s{S_B0}, s{S_B0}, s{S_T+1}")
        g(f"s_lshl_b32 s{S_T+1}, s{S_KX}, 17")
        g(f"s_add_u32 s{S_N0}, s{S_N0}, s{S_T+1}")
    if o.stamp: g("s_memtime s[84:85]")
    g("s_waitcnt lgkmcnt(0)")
    if o.stamp: g("s_memtime s[86:87]")
    g(f"s_add_u32 s{S_XS}, s4, s{S_B0}")
    g(f"s_addc_u32 s{S_XS+1}, s5, 0")
    g(f"s_mov_b32 s{S_XS+2}, s{S_XN}")
    g(f"s_add_u32 s{S_WS}, s6, s{S_N0}")
    g(f"s_addc_u32 s{S_WS+1}, s7, 0")
    g(f"s_mov_b32 s{S_WS+2}, s{S_WN}")
    xs = f"s[{S_XS}:{S_XS+3}]"; ws = f"s[{S_WS}:{S_WS+3}]"
    def ld(v, srd, so, off, fl):
        offs = f" offset:{off}" if off else ""
        return f"buffer_load_dwordx4 v{v}, {srd}, {so} offen{offs}{fl} lds"
    def x_chunk():
        for ii in range(8):
            if ii == 0: g(f"s_mov_b32 m0, s{S_MX}"); g("s_nop 0")
            if ii == 4: g(f"s_add_u32 m0, s{S_MX}, 4096"); g("s_nop 0")
            v = V_XD[2 * (ii >> 2) + (ii & 1)] if o.only != "w" else V_ZERO
            g(ld(v, xs, "0" if (ii & 3) == 0 else f"s{S_XO[ii & 3]}", (ii & 3) * 1024, o.xfl))
        g(f"s_add_u32 s{S_XS}, s{S_XS}, 128")
        g(f"s_addc_u32 s{S_XS+1}, s{S_XS+1}, 0")
        g(f"s_xor_b32 s{S_MX}, s{S_MX}, {XSLOT}")
        if o.rot:
            g(f"s_add_u32 s{S_KX}, s{S_KX}, 1")
            g(f"s_cmp_eq_u32 s{S_KX}, 16")
            g(f"s_cselect_b32 s{S_T+1}, 2048, 0")
            g(f"s_sub_u32 s{S_XS}, s{S_XS}, s{S_T+1}")
            g(f"s_subb_u32 s{S_XS+1}, s{S_XS+1}, 0")
    def w_stage():
        for j in range(6):
            if j == 0: g(f"s_mov_b32 m0, s{S_MW}"); g("s_nop 0")
            if j == 4: g(f"s_add_u32 m0, s{S_MW}, 4096"); g("s_nop 0")
            g(ld(V_WD if o.only != "x" else V_ZERO, ws, f"s{S_WO[j]}", (j % 4) * 1024, o.wfl))
        g(f"s_add_u32 s{S_WS}, s{S_WS}, 65536")
        g(f"s_addc_u32 s{S_WS+1}, s{S_WS+1}, 0")
        g(f"s_add_u32 s{S_MW}, s{S_MW}, {WSLOT}")
        g(f"s_cmp_eq_u32 s{S_MW}, s{S_WLIM}")
        g(f"s_cselect_b32 s{S_T+1}, {4*WSLOT}, 0")
        g(f"s_sub_u32 s{S_MW}, s{S_MW}, s{S_T+1}")
        if o.rot:
            g(f"s_add_u32 s{S_KW}, s{S_KW}, 1")
            g(f"s_cmp_eq_u32 s{S_KW}, 32")
            g(f"s_cselect_b32 s{S_T+1}, 2097152, 0")
            g(f"s_sub_u32 s{S_WS}, s{S_WS}, s{S_T+1}")
            g(f"s_subb_u32 s{S_WS+1}, s{S_WS+1}, 0")
    w_stage(); x_chunk(); w_stage()
    npf = 0
    if o.pf:
        g(f"s_mov_b32 s{S_PS}, s4"); g(f"s_mov_b32 s{S_PS+1}, s5"); g(f"s_mov_b32 s{S_PS+2}, 16777216")
        g(f"s_mov_b32 s{S_OS}, s6"); g(f"s_mov_b32 s{S_OS+1}, s7"); g(f"s_mov_b32 s{S_OS+2}, 6291456")
        g(f"s_and_b32 s{S_T+1}, s{S_B0}, 0xfff80000")
        g(f"s_bfe_u32 s{S_T+2}, s{S_N0}, 0x30008")
        g(f"s_lshl_b32 s{S_T+2}, s{S_T+2}, 16")
        g(f"s_add_u32 s{S_T+1}, s{S_T+1}, s{S_T+2}")
        g(f"s_lshl_b32 s{S_T+2}, s{S_T}, 14")
        g(f"s_add_u32 s{S_T+1}, s{S_T+1}, s{S_T+2}")
        g(f"v_lshlrev_b32 v20, 7, v0")
        for i in range(2):
            g(f"buffer_load_dword v{21+i}, v20, s[{S_PS}:{S_PS+3}], s{S_T+1} offen{o.pffl}")
            g(f"s_add_u32 s{S_T+1}, s{S_T+1}, 8192")
            npf += 1
        g(f"s_mul_i32 s{S_T+1}, s2, 24576")
        g(f"s_lshl_b32 s{S_T+2}, s{S_T}, 13")
        g(f"s_add_u32 s{S_T+1}, s{S_T+1}, s{S_T+2}")
        g(f"s_cmp_eq_u32 s{S_T}, 3")
        g(f"s_cselect_b32 s{S_OS+2}, 0, s{S_OS+2}")
        g(f"buffer_load_dword v23, v20, s[{S_OS}:{S_OS+3}], s{S_T+1} offen{o.pffl}")
        npf += 1
    if o.stamp: g("s_memtime s[88:89]")
    g(f"s_waitcnt vmcnt({14 + npf})")
    if o.stamp: g("s_memtime s[90:91]")
    g(f"s_waitcnt vmcnt({6 + npf})")
    if o.stamp: g("s_memtime s[92:93]")
    g("s_barrier")
    w_stage(); x_chunk(); w_stage()
    if o.codepf:
        g("s_getpc_b64 s[94:95]")
        g.label("L_pc")
        g("s_add_u32 s94, s94, L_loop-L_pc")
        g("s_addc_u32 s95, s95, 0")
        g("v_lshlrev_b32 v20, 7, v0")
        g("v_min_u32 v23, L_end-L_loop, v20")
        g("global_load_dword v21, v23, s[94:95]")
        g("v_add_u32 v20, 8192, v20")
        g("v_min_u32 v20, L_end-L_loop, v20")
        g("global_load_dword v22, v20, s[94:95]")
    g(f"s_mov_b32 s{S_CNT}, 4")
    if npf:
        pass
    g.label("L_ld_loop")
    g(f"s_cmp_lt_u32 s{S_CNT}, 32")
    g(f"s_cselect_b32 s{S_XS+2}, s{S_XN}, 0")
    g(f"s_cselect_b32 s{S_WS+2}, s{S_WN}, 0")
    def lstamp(k):
        if o.stamp:
            g("s_memrealtime s[80:81]")
            g("s_memtime s[82:83]")
            g(f"s_add_u32 m0, s{S_CNT}, {k - 4}")
            g("s_waitcnt lgkmcnt(0)")
            g("v_writelane_b32 v30, s80, m0")
            g("v_writelane_b32 v31, s82, m0")
    g("s_waitcnt vmcnt(20)")
    g("s_barrier")
    if not o.nodma: w_stage()
    lstamp(0)
    g("s_waitcnt vmcnt(12)")
    g("s_barrier")
    if not o.nodma: x_chunk(); w_stage()
    lstamp(1)
    g(f"s_add_u32 s{S_CNT}, s{S_CNT}, 2")
    g(f"s_cmp_lt_u32 s{S_CNT}, 36")
    g("s_cbranch_scc1 L_ld_loop")
    if o.stamp:
        g(f"s_lshl_b32 s{S_T+1}, s2, 2")
        g(f"s_add_u32 s{S_T+1}, s{S_T+1}, s{S_T}")
        g(f"s_lshl_b32 s{S_T+1}, s{S_T+1}, 8")
        g(f"s_add_u32 s{S_T+1}, s{S_T+1}, 65536")
        g(f"s_mov_b32 s{S_PS}, s54")
        g(f"s_mov_b32 s{S_PS+1}, s55")
        g(f"s_mov_b32 s{S_PS+2}, 0x100000")
        g(f"v_lshlrev_b32 v29, 2, v0")
        g("s_mov_b64 exec, 0xffffffff")
        g(f"buffer_store_dword v30, v29, s[{S_PS}:{S_PS+3}], s{S_T+1} offen")
        g(f"buffer_store_dword v31, v29, s[{S_PS}:{S_PS+3}], s{S_T+1} offen offset:128")
        for i, r in enumerate((84, 86, 88, 90, 92)):
            g(f"s_sub_u32 s{r}, s{r}, s{S_STAMP}")
            g(f"v_writelane_b32 v32, s{r}, {i}")
        g(f"s_add_u32 s{S_T+1}, s{S_T+1}, 262144")
        g(f"buffer_store_dword v32, v29, s[{S_PS}:{S_PS+3}], s{S_T+1} offen")
    g("s_endpgm")

    g.label("L_consumer")
    g(f"s_mov_b32 s{S_PS+2}, 2048")
    g(f"v_lshrrev_b32 v{V_T}, 4, v0")
    g(f"v_lshlrev_b32 v{V_T}, 3, v{V_T}")
    g(f"s_lshl_b32 s{S_T+1}, s{S_T}, 6")
    g(f"s_add_u32 s{S_T+1}, s{S_T+1}, s{S_N0}")
    g(f"v_add_u32 v{V_T}, s{S_T+1}, v{V_T}")
    g("s_waitcnt lgkmcnt(0)")
    V_RAW = V_XB
    nraw = NBN // 2
    for pi in range(4):
        g(f"s_mov_b32 s{S_PS}, s{44+2*pi}")
        g(f"s_mov_b32 s{S_PS+1}, s{45+2*pi}")
        for d in range(2):
            g(f"buffer_load_dwordx2 {vr(V_RAW+pi*nraw+2*d,2)}, v{V_T}, s[{S_PS}:{S_PS+3}], 0 offen offset:{32*d}")
    g(f"v_and_b32 v{V_T}, 15, v0")
    g(f"v_lshrrev_b32 v{V_T+1}, 1, v{V_T}")
    g(f"v_lshrrev_b32 v{V_T+2}, 4, v0")
    g(f"v_xor_b32 v{V_T+1}, v{V_T+1}, v{V_T+2}")
    g(f"v_lshlrev_b32 v{V_T+1}, 4, v{V_T+1}")
    g(f"v_lshl_add_u32 v{V_XA[0]}, v{V_T}, 7, v{V_T+1}")
    g(f"v_xor_b32 v{V_XA[1]}, 64, v{V_XA[0]}")
    g(f"v_bfe_u32 v{V_T}, v0, 2, 2")
    g(f"v_xor_b32 v{V_T+1}, s{S_T}, v{V_T}")
    g(f"v_lshlrev_b32 v{V_T+1}, 6, v{V_T+1}")
    g(f"v_lshl_add_u32 v{V_T+1}, v{V_T}, 8, v{V_T+1}")
    g(f"v_mul_u32_u24 v{V_T+3}, {WREG}, v{V_T+2}")
    g(f"v_add_u32 v{V_T+1}, v{V_T+1}, v{V_T+3}")
    g(f"v_and_b32 v{V_T+2}, 1, v{V_T+2}")
    g(f"v_lshl_add_u32 v{V_T+1}, v{V_T+2}, 5, v{V_T+1}")
    g(f"v_and_b32 v{V_T+2}, 3, v0")
    g(f"v_lshl_add_u32 v{V_T+1}, v{V_T+2}, 3, v{V_T+1}")
    g(f"v_add_u32 v{V_WA[0]}, {WBASE}, v{V_T+1}")
    g(f"v_xor_b32 v{V_WA[1]}, 32, v{V_WA[0]}")
    g(f"s_add_u32 s{S_T+1}, s{S_B0}, s{S_N0}")
    g(f"s_add_u32 s{S_OS}, s52, s{S_T+1}")
    g(f"s_addc_u32 s{S_OS+1}, s53, 0")
    g(f"s_sub_u32 s{S_OS+2}, 16777216, s{S_T+1}")
    g(f"v_and_b32 v{V_T}, 15, v0")
    g(f"v_lshlrev_b32 v{V_T}, 14, v{V_T}")
    g(f"v_bfe_u32 v{V_T+1}, v0, 4, 1")
    g(f"v_lshl_add_u32 v{V_T}, v{V_T+1}, 5, v{V_T}")
    g(f"v_lshrrev_b32 v{V_T+1}, 5, v0")
    g(f"v_lshl_add_u32 v{V_T}, v{V_T+1}, 4, v{V_T}")
    g(f"s_lshl_b32 s{S_T+1}, s{S_T}, 6")
    g(f"v_add_u32 v{V_OUT}, s{S_T+1}, v{V_T}")
    for i in range(128):
        g(f"v_accvgpr_write_b32 a{i}, 0" if o.agpr else f"v_mov_b32 v{V_ACC+i}, 0")
    g("s_waitcnt vmcnt(0)")
    M_, V_, G_, B_ = (V_RAW + i * nraw for i in range(4))
    TA, TB = V_WB[1], V_WB[1] + 1
    g(f"s_mov_b32 s{S_T+1}, 0x3727c5ac")
    def unpack(dst, src, hi):
        if hi: g(f"v_and_b32 v{dst}, 0xffff0000, v{src}")
        else:  g(f"v_lshlrev_b32 v{dst}, 16, v{src}")
    for k in range(nraw):
        lo, hi = V_SC + 2 * k, V_SC + 2 * k + 1
        unpack(lo, V_ + k, 0); unpack(hi, V_ + k, 1)
        g(f"v_add_f32 v{lo}, s{S_T+1}, v{lo}")
        g(f"v_add_f32 v{hi}, s{S_T+1}, v{hi}")
        g(f"v_cvt_pk_bf16_f32 v{TA}, v{lo}, v{hi}")
        unpack(lo, TA, 0); unpack(hi, TA, 1)
        g(f"v_sqrt_f32 v{lo}, v{lo}")
        g(f"v_sqrt_f32 v{hi}, v{hi}")
        g("s_nop 0")
        g(f"v_cvt_pk_bf16_f32 v{TA}, v{lo}, v{hi}")
        unpack(lo, TA, 0); unpack(hi, TA, 1)
        g(f"v_rcp_f32 v{lo}, v{lo}")
        g(f"v_rcp_f32 v{hi}, v{hi}")
        g("s_nop 0")
        g(f"v_cvt_pk_bf16_f32 v{TA}, v{lo}, v{hi}")
        unpack(lo, TA, 0); unpack(hi, TA, 1)
        unpack(TA, G_ + k, 0); unpack(TB, G_ + k, 1)
        g(f"v_mul_f32 v{lo}, v{lo}, v{TA}")
        g(f"v_mul_f32 v{hi}, v{hi}, v{TB}")
        g(f"v_cvt_pk_bf16_f32 v{TA}, v{lo}, v{hi}")
        unpack(lo, TA, 0); unpack(hi, TA, 1)
        slo, shi = V_SH + 2 * k, V_SH + 2 * k + 1
        unpack(slo, B_ + k, 0); unpack(shi, B_ + k, 1)
        unpack(TA, M_ + k, 0); unpack(TB, M_ + k, 1)
        g(f"v_fma_f32 v{slo}, -v{TA}, v{lo}, v{slo}")
        g(f"v_fma_f32 v{shi}, -v{TB}, v{hi}, v{shi}")

    def xread(p, f):
        s, q = f >> 1, f & 1
        buf = V_XB + (f % NXB) * 4
        return f"ds_read_b128 {vr(buf,4)}, v{V_XA[p]} offset:{s * 4096 + q * 2048}"
    def wread(p, t, d, h):
        dst = wfrag(p, t, d) + 2 * h
        return f"ds_read_b64_tr_b16 {vr(dst,2)}, v{V_WA[d]} offset:{p * WSLOT + t*2048 + h*1024}"
    def group_mfmas(p, f):
        s, q = f >> 1, f & 1
        buf = V_XB + (f % NXB) * 4
        out = []
        for t in range(3):
            sp = s - t + 1
            if not 0 <= sp <= 7: continue
            for d in range(2):
                a = acc(sp, q, d)
                out.append((f"v_mfma_f32_16x16x32_bf16 {vr(a,4)}, {vr(wfrag(p,t,d),4)}, {vr(buf,4)}, {vr(a,4)}",
                            [("x", f), ("w", t, d, 0), ("w", t, d, 1)]))
        return out
    worder = [(t, d, h) for t in range(3) for d in range(2) for h in range(2)]

    def stage_stream(p):
        items = []
        groups = [group_mfmas(p, f) for f in range(16)]
        nm = sum(len(x) for x in groups)
        fill = [[] for _ in range(nm)]
        start = [sum(len(x) for x in groups[:f]) for f in range(17)]
        fb = 16 - L
        for f in range(16):
            if f + L < 16:
                fill[start[f]].append(("l", xread(p, f + L), ("x", f + L, 0)))
        ib = start[fb + 1] - 1
        fill[ib].append(("bar",))
        fill[ib].append(("l", xread(1 - p, 0), ("x", 0, 1)))
        taken = set()
        for f in range(fb + 1, 16):
            fill[start[f]].append(("l", xread(1 - p, f + L - 16), ("x", f + L - 16, 1)))
            taken.add(start[f])
        free = [i for i in range(ib + 1, nm) if i not in taken]
        for k, w_ in enumerate(worder):
            fill[free[min(k // o.wper, len(free) - 1)]].append(("l", wread(1 - p, *w_), ("w",) + w_ + (1,)))
        fill[start[15 - L] + 1].append(("i", f"v_xor_b32 v{V_XA[p]}, {XSLOT}, v{V_XA[p]}"))
        if p == 1:
            fill[1].append(("i", f"v_add_u32 v{V_WA[0]}, s{S_DELTA}, v{V_WA[0]}"))
            fill[2].append(("i", f"v_add_u32 v{V_WA[1]}, s{S_DELTA}, v{V_WA[1]}"))
            fill[nm - 4].append(("i", f"s_sub_u32 s{S_DELTA}, 0, s{S_DELTA}"))
            fill[nm - 3].append(("i", f"s_add_u32 s{S_CNT}, s{S_CNT}, 2"))
            fill[nm - 2].append(("i", f"s_cmp_lt_u32 s{S_CNT}, 32"))
        i = 0
        for f in range(16):
            for (txt, needs) in groups[f]:
                items.append(("m", txt, needs))
                items += fill[i]
                i += 1
        return items

    streams = [stage_stream(0), stage_stream(1)]
    def place_waits():
        seq = []; done = -1; out = None
        for it in range(3):
            cur = []
            for p in range(2):
                st = 2 * it + p
                for item in streams[p]:
                    if item[0] == "m":
                        need = -1
                        for n_ in item[2]:
                            key = n_ + (st,)
                            idx = [i for i, t_ in enumerate(seq) if t_ == key]
                            if idx: need = max(need, idx[-1])
                            else: assert st == 0, key
                        if need > done:
                            cnt = min(len(seq) - 1 - need, 15)
                            cur.append(f"s_waitcnt lgkmcnt({cnt})")
                            done = len(seq) - 1 - cnt
                        cur.append(item[1])
                    elif item[0] == "l":
                        tag = item[2]
                        seq.append(tag[:-1] + (st + tag[-1],))
                        cur.append(item[1])
                    elif item[0] == "bar":
                        cur.append("s_waitcnt lgkmcnt(0)")
                        cur.append("s_barrier")
                        done = len(seq) - 1
                    else:
                        cur.append(item[1])
            if it == 2: assert cur == out
            out = cur
        return out
    body = place_waits()
    if o.nolds:
        body = [b for b in body if not (b.startswith("ds_read") or b.startswith("s_waitcnt lgkmcnt"))]
    if o.keep < 0:
        body = [b for b in body if not b.startswith("v_mfma")]

    if o.agpr:
        import re
        def ren(b):
            if not b.startswith("v_mfma"): return b
            return re.sub(r"v\[(\d+):(\d+)\]", lambda m: f"a[{int(m.group(1))-128}:{int(m.group(2))-128}]" if int(m.group(1)) >= 128 else m.group(0), b)
        body = [ren(b) for b in body]
    g("s_barrier")
    if o.stamp:
        g(f"s_memtime s[{S_STAMP+4}:{S_STAMP+5}]")
        g(f"s_memrealtime s[{S_STAMP+14}:{S_STAMP+15}]")
        g("s_waitcnt lgkmcnt(0)")
    for w_ in worder: g(wread(0, *w_))
    for f in range(L): g(xread(0, f))
    g(f"s_mov_b32 s{S_DELTA}, {2*WSLOT}")
    g(f"s_mov_b32 s{S_CNT}, 0")
    g("s_waitcnt lgkmcnt(0)")
    g.raw(".p2align 6")
    g.label("L_loop")
    for s_ in body: g(s_)
    g("s_cbranch_scc1 L_loop")
    if o.stamp:
        g(f"s_memtime s[{S_STAMP+6}:{S_STAMP+7}]")
        g(f"s_memrealtime s[{S_STAMP+16}:{S_STAMP+17}]")
    g("s_nop 15")
    g(f"s_mov_b32 s{S_T+2}, 0xbfb8aa3b")
    ui = 0
    for sp in range(8):
        for bg in range(2):
            regs = [(acc(sp, bg, d) + j, d * 4 + j) for d in range(2) for j in range(4)]
            soff = (bg * 128 + sp) * 2048
            n = len(regs)
            E = V_WB[0] + (ui % 2) * 16
            P = V_XB + (ui % 4) * 8
            if o.agpr:
                nregs = []
                for i, (a, k) in enumerate(regs):
                    g(f"v_accvgpr_read_b32 v{112+i}, a{a-128}")
                    nregs.append((112 + i, k))
                regs = nregs
            for (a, k) in regs: g(f"v_fma_f32 v{a}, v{a}, v{V_SC+k}, v{V_SH+k}")
            for i, (a, k) in enumerate(regs): g(f"v_mul_f32 v{E+i}, s{S_T+2}, v{a}")
            for i in range(n): g(f"v_exp_f32 v{E+i}, v{E+i}")
            for i in range(n): g(f"v_add_f32 v{E+i}, 1.0, v{E+i}")
            for i in range(n): g(f"v_rcp_f32 v{E+i}, v{E+i}")
            for i, (a, k) in enumerate(regs): g(f"v_mul_f32 v{a}, v{a}, v{E+i}")
            for i in range(4):
                g(f"v_cvt_pk_bf16_f32 v{P+i}, v{regs[2*i][0]}, v{regs[2*i+1][0]}")
            g(f"s_mov_b32 s{S_T+3}, {soff}")
            g("s_nop 0")
            g(f"v_permlane16_swap_b32 v{P}, v{P+2}")
            g(f"v_permlane16_swap_b32 v{P+1}, v{P+3}")
            g(f"buffer_store_dwordx4 {vr(P,4)}, v{V_OUT}, s[{S_OS}:{S_OS+3}], s{S_T+3} offen{o.stflags}")
            ui += 1
    if o.stamp:
        g(f"s_memtime s[{S_STAMP+8}:{S_STAMP+9}]")
        g("s_waitcnt vmcnt(0)")
        g(f"s_memtime s[{S_STAMP+10}:{S_STAMP+11}]")
        g(f"s_memrealtime s[{S_STAMP+12}:{S_STAMP+13}]")
        g("s_waitcnt lgkmcnt(0)")
        g(f"s_lshl_b32 s{S_T+1}, s2, 2")
        g(f"s_add_u32 s{S_T+1}, s{S_T+1}, s{S_T}")
        g(f"s_lshl_b32 s{S_T+1}, s{S_T+1}, 6")
        g(f"s_mov_b32 s{S_PS}, s54")
        g(f"s_mov_b32 s{S_PS+1}, s55")
        g(f"s_mov_b32 s{S_PS+2}, 0x100000")
        g(f"v_mov_b32 v{V_T}, s{S_T+1}")
        for i in range(14):
            g(f"v_mov_b32 v{V_WB[0]+i}, s{S_STAMP+i}")
        g(f"v_mov_b32 v{V_WB[0]+14}, s{S_STAMP+14}")
        g(f"v_mov_b32 v{V_WB[0]+15}, s{S_STAMP+16}")
        g("s_mov_b64 exec, 1")
        for i in range(4):
            g(f"buffer_store_dwordx4 {vr(V_WB[0]+4*i,4)}, v{V_T}, s[{S_PS}:{S_PS+3}], 0 offen offset:{16*i}")
    g.label("L_end")
    g("s_endpgm")
    g.raw('.section .rodata,"a"')
    g.raw(".p2align 6")
    g.raw(f".amdhsa_kernel {KN}")
    g.raw("  .amdhsa_next_free_vgpr 256")
    g.raw("  .amdhsa_next_free_sgpr 96")
    g.raw("  .amdhsa_accum_offset %d" % (128 if o.agpr else 256))
    g.raw("  .amdhsa_group_segment_fixed_size 0")
    g.raw("  .amdhsa_kernarg_size 72")
    g.raw("  .amdhsa_user_sgpr_count 2")
    g.raw("  .amdhsa_user_sgpr_kernarg_segment_ptr 1")
    g.raw("  .amdhsa_system_sgpr_workgroup_id_x 1")
    g.raw(".end_amdhsa_kernel")
    return g.text()

if __name__ == "__main__":
    ap = argparse.ArgumentParser()
    ap.add_argument("--lead", type=int, default=6)
    ap.add_argument("--wper", type=int, default=1)
    ap.add_argument("--stflags", default="")
    ap.add_argument("--xfl", default="")
    ap.add_argument("--wfl", default="")
    ap.add_argument("--pffl", default="")
    ap.add_argument("--stamp", action="store_true")
    ap.add_argument("--nolds", action="store_true")
    ap.add_argument("--nodma", action="store_true")
    ap.add_argument("--keep", type=int, default=0)
    ap.add_argument("--only", default="")
    ap.add_argument("--rot", type=int, default=0)
    ap.add_argument("--rotsel", default="m")
    ap.add_argument("--map", default="8x4")
    ap.add_argument("--pf", action="store_true")
    ap.add_argument("--agpr", action="store_true")
    ap.add_argument("--codepf", action="store_true")
    ap.add_argument("-o", default="-")
    o = ap.parse_args()
    for k in ("stflags", "xfl", "wfl", "pffl"):
        if getattr(o, k): setattr(o, k, " " + getattr(o, k))
    t = gen(o)
    if o.o == "-": sys.stdout.write(t)
    else: open(o.o, "w").write(t)
```

```python
import sys, argparse
from gen import HEADER, KN, G, vr

XSLOT = 32768
WBASE = 65536
WSLOT = 24576
WREG = 6144

def gen(o):
    g = G()
    L = o.lead
    NXB = 8
    V_XD = [1, 2, 3, 4]
    V_WD = 5
    V_XA = [6, 7]
    V_WA = [8, 9]
    V_OUT = 11
    V_T = 12
    V_SC, V_SH = 16, 32
    V_ZERO = 47
    V_XB = 48
    V_WB = [80, 104]
    V_ACC = 128
    NBN = 8
    S_XS, S_WS, S_OS, S_PS = 8, 12, 16, 20
    S_WAVE, S_B0, S_N0 = 24, 25, 26
    S_MX, S_MW = 27, 28
    S_DELTA, S_CNT = 29, 30
    S_XO = [None, 31, 56, 57]
    S_WO = [32, 33, 34, 35, 36, 37]
    S_XN, S_WN = 38, 39
    S_T = 40
    S_KX, S_KW, S_WLIM = 58, 59, 78
    S_STAMP = 60

    def acc(sp, bg, d): return V_ACC + ((sp * 2 + bg) * 2 + d) * 4
    def wfrag(p, t, d): return V_WB[p] + (t * 2 + d) * 4

    g.raw(HEADER + f"; @launch grid=(256,1,1) block=(512,1,1) lds=163840")
    g.raw('.amdgcn_target "amdgcn-amd-amdhsa--gfx950"')
    g.raw(".text")
    g.raw(f".globl {KN}")
    g.raw(".p2align 8")
    g.raw(f".type {KN},@function")
    g.label(KN)
    g("s_cmp_ge_u32 s2, 256")
    g("s_cbranch_scc1 L_end")
    if o.stamp:
        g(f"s_memtime s[{S_STAMP}:{S_STAMP+1}]")
        g(f"s_memrealtime s[{S_STAMP+2}:{S_STAMP+3}]")
    g("s_load_dwordx4 s[4:7], s[0:1], 0")
    g("s_load_dwordx8 s[44:51], s[0:1], 16")
    g("s_load_dwordx2 s[52:53], s[0:1], 48")
    if o.stamp:
        g("s_load_dwordx2 s[54:55], s[0:1], 64")
        g("s_load_dwordx2 s[96:97], s[0:1], 56")
    g("s_and_b32 s3, s2, 7")
    g(f"s_lshr_b32 s{S_T}, s2, 3")
    if o.map == "8x4":
        g(f"s_lshr_b32 s{S_B0}, s3, 1")
        g(f"s_lshl_b32 s{S_B0}, s{S_B0}, 3")
        g(f"s_lshr_b32 s{S_T+1}, s{S_T}, 2")
        g(f"s_add_u32 s{S_B0}, s{S_B0}, s{S_T+1}")
        g(f"s_and_b32 s{S_N0}, s3, 1")
        g(f"s_lshl_b32 s{S_N0}, s{S_N0}, 2")
        g(f"s_and_b32 s{S_T+1}, s{S_T}, 3")
        g(f"s_add_u32 s{S_N0}, s{S_N0}, s{S_T+1}")
    elif o.map == "4x8":
        g(f"s_lshl_b32 s{S_B0}, s3, 2")
        g(f"s_lshr_b32 s{S_T+1}, s{S_T}, 3")
        g(f"s_add_u32 s{S_B0}, s{S_B0}, s{S_T+1}")
        g(f"s_and_b32 s{S_N0}, s{S_T}, 7")
    g(f"s_lshl_b32 s{S_B0}, s{S_B0}, 19")
    g(f"s_lshl_b32 s{S_N0}, s{S_N0}, 8")
    g(f"v_lshrrev_b32 v{V_T}, 6, v0")
    g("v_and_b32 v0, 63, v0")
    g(f"v_readfirstlane_b32 s{S_WAVE}, v{V_T}")
    g(f"s_mov_b32 s{S_XS+3}, 0x20000")
    g(f"s_mov_b32 s{S_WS+3}, 0x20000")
    g(f"s_mov_b32 s{S_OS+3}, 0x20000")
    g(f"s_mov_b32 s{S_PS+3}, 0x20000")
    g(f"s_and_b32 s{S_T}, s{S_WAVE}, 3")
    g(f"s_cmp_lt_u32 s{S_WAVE}, 4")
    g("s_cbranch_scc1 L_consumer")

    g(f"v_lshrrev_b32 v{V_T}, 4, v0")
    g(f"v_xor_b32 v{V_T+1}, v{V_T}, v0")
    g(f"v_and_b32 v{V_T+1}, 7, v{V_T+1}")
    g(f"v_lshlrev_b32 v{V_T+1}, 4, v{V_T+1}")
    g(f"v_lshrrev_b32 v{V_T+2}, 3, v0")
    g(f"v_lshl_add_u32 v{V_XD[0]}, v{V_T+2}, 14, v{V_T+1}")
    g(f"s_lshl_b32 s{S_T+1}, s{S_T}, 12")
    g(f"v_add_u32 v{V_XD[0]}, s{S_T+1}, v{V_XD[0]}")
    g(f"v_xor_b32 v{V_XD[1]}, 64, v{V_XD[0]}")
    g(f"v_add_u32 v{V_XD[2]}, 2048, v{V_XD[0]}")
    g(f"v_add_u32 v{V_XD[3]}, 2048, v{V_XD[1]}")
    g(f"s_and_b32 s{S_T+2}, s{S_T}, 1")
    g(f"s_lshl_b32 s{S_T+2}, s{S_T+2}, 1")
    g(f"v_lshl_add_u32 v{V_T+1}, v{V_T}, 2, s{S_T+2}")
    g(f"v_xor_b32 v{V_T+1}, v{V_T+1}, v0")
    g(f"v_and_b32 v{V_T+1}, 15, v{V_T+1}")
    g(f"v_lshlrev_b32 v{V_T+1}, 4, v{V_T+1}")
    g(f"v_lshl_add_u32 v{V_WD}, v{V_T}, 11, v{V_T+1}")
    g(f"s_lshl_b32 s{S_T+1}, s{S_T}, 14")
    g(f"v_add_u32 v{V_WD}, s{S_T+1}, v{V_WD}")
    if o.only: g(f"v_mov_b32 v{V_ZERO}, 0x7ff00000")
    for i in range(1, 4):
        g(f"s_mov_b32 s{S_XO[i]}, {i * (131072 - 1024)}")
    for j in range(6):
        t, qq = j >> 1, j & 1
        g(f"s_mov_b32 s{S_WO[j]}, {t * 2097152 + qq * 8192 - (j % 4) * 1024}")
    g(f"s_lshl_b32 s{S_MX}, s{S_T}, 13")
    g(f"s_mul_i32 s{S_MW}, s{S_T}, {WREG}")
    g(f"s_add_u32 s{S_MW}, s{S_MW}, {WBASE}")
    g(f"s_add_u32 s{S_WLIM}, s{S_MW}, {4*WSLOT}")
    g(f"s_sub_u32 s{S_XN}, 16777216, s{S_B0}")
    g(f"s_sub_u32 s{S_WN}, 6291456, s{S_N0}")
    if o.rot:
        if o.rotsel == "m": g(f"s_lshr_b32 s{S_KX}, s3, 1")
        elif o.rotsel == "xcd": g(f"s_mov_b32 s{S_KX}, s3")
        elif o.rotsel == "n": g(f"s_and_b32 s{S_KX}, s3, 1")
        g(f"s_mul_i32 s{S_KX}, s{S_KX}, {o.rot}")
        g(f"s_and_b32 s{S_KX}, s{S_KX}, 15")
        g(f"s_lshl_b32 s{S_KW}, s{S_KX}, 1")
        g(f"s_lshl_b32 s{S_T+1}, s{S_KX}, 7")
        g(f"s_add_u32 s{S_B0}, s{S_B0}, s{S_T+1}")
        g(f"s_lshl_b32 s{S_T+1}, s{S_KX}, 17")
        g(f"s_add_u32 s{S_N0}, s{S_N0}, s{S_T+1}")
    if o.stamp: g("s_memtime s[84:85]")
    g("s_waitcnt lgkmcnt(0)")
    if o.stamp: g("s_memtime s[86:87]")
    g(f"s_add_u32 s{S_XS}, s4, s{S_B0}")
    g(f"s_addc_u32 s{S_XS+1}, s5, 0")
    g(f"s_mov_b32 s{S_XS+2}, s{S_XN}")
    g(f"s_add_u32 s{S_WS}, s6, s{S_N0}")
    g(f"s_addc_u32 s{S_WS+1}, s7, 0")
    g(f"s_mov_b32 s{S_WS+2}, s{S_WN}")
    xs = f"s[{S_XS}:{S_XS+3}]"; ws = f"s[{S_WS}:{S_WS+3}]"
    def ld(v, srd, so, off, fl):
        offs = f" offset:{off}" if off else ""
        return f"buffer_load_dwordx4 v{v}, {srd}, {so} offen{offs}{fl} lds"
    def x_chunk():
        for ii in range(8):
            if ii == 0: g(f"s_mov_b32 m0, s{S_MX}"); g("s_nop 0")
            if ii == 4: g(f"s_add_u32 m0, s{S_MX}, 4096"); g("s_nop 0")
            v = V_XD[2 * (ii >> 2) + (ii & 1)] if o.only != "w" else V_ZERO
            g(ld(v, xs, "0" if (ii & 3) == 0 else f"s{S_XO[ii & 3]}", (ii & 3) * 1024, o.xfl))
        g(f"s_add_u32 s{S_XS}, s{S_XS}, 128")
        g(f"s_addc_u32 s{S_XS+1}, s{S_XS+1}, 0")
        g(f"s_xor_b32 s{S_MX}, s{S_MX}, {XSLOT}")
        if o.rot:
            g(f"s_add_u32 s{S_KX}, s{S_KX}, 1")
            g(f"s_cmp_eq_u32 s{S_KX}, 16")
            g(f"s_cselect_b32 s{S_T+1}, 2048, 0")
            g(f"s_sub_u32 s{S_XS}, s{S_XS}, s{S_T+1}")
            g(f"s_subb_u32 s{S_XS+1}, s{S_XS+1}, 0")
    def w_stage():
        for j in range(6):
            if j == 0: g(f"s_mov_b32 m0, s{S_MW}"); g("s_nop 0")
            if j == 4: g(f"s_add_u32 m0, s{S_MW}, 4096"); g("s_nop 0")
            g(ld(V_WD if o.only != "x" else V_ZERO, ws, f"s{S_WO[j]}", (j % 4) * 1024, o.wfl))
        g(f"s_add_u32 s{S_WS}, s{S_WS}, 65536")
        g(f"s_addc_u32 s{S_WS+1}, s{S_WS+1}, 0")
        g(f"s_add_u32 s{S_MW}, s{S_MW}, {WSLOT}")
        g(f"s_cmp_eq_u32 s{S_MW}, s{S_WLIM}")
        g(f"s_cselect_b32 s{S_T+1}, {4*WSLOT}, 0")
        g(f"s_sub_u32 s{S_MW}, s{S_MW}, s{S_T+1}")
        if o.rot:
            g(f"s_add_u32 s{S_KW}, s{S_KW}, 1")
            g(f"s_cmp_eq_u32 s{S_KW}, 32")
            g(f"s_cselect_b32 s{S_T+1}, 2097152, 0")
            g(f"s_sub_u32 s{S_WS}, s{S_WS}, s{S_T+1}")
            g(f"s_subb_u32 s{S_WS+1}, s{S_WS+1}, 0")
    w_stage(); x_chunk(); w_stage()
    npf = 0
    if o.pf:
        g(f"s_mov_b32 s{S_PS}, s4"); g(f"s_mov_b32 s{S_PS+1}, s5"); g(f"s_mov_b32 s{S_PS+2}, 16777216")
        g(f"s_mov_b32 s{S_OS}, s6"); g(f"s_mov_b32 s{S_OS+1}, s7"); g(f"s_mov_b32 s{S_OS+2}, 6291456")
        g(f"s_and_b32 s{S_T+1}, s{S_B0}, 0xfff80000")
        g(f"s_bfe_u32 s{S_T+2}, s{S_N0}, 0x30008")
        g(f"s_lshl_b32 s{S_T+2}, s{S_T+2}, 16")
        g(f"s_add_u32 s{S_T+1}, s{S_T+1}, s{S_T+2}")
        g(f"s_lshl_b32 s{S_T+2}, s{S_T}, 14")
        g(f"s_add_u32 s{S_T+1}, s{S_T+1}, s{S_T+2}")
        g(f"v_lshlrev_b32 v20, 7, v0")
        for i in range(2):
            g(f"buffer_load_dword v{21+i}, v20, s[{S_PS}:{S_PS+3}], s{S_T+1} offen{o.pffl}")
            g(f"s_add_u32 s{S_T+1}, s{S_T+1}, 8192")
            npf += 1
        g(f"s_mul_i32 s{S_T+1}, s2, 24576")
        g(f"s_lshl_b32 s{S_T+2}, s{S_T}, 13")
        g(f"s_add_u32 s{S_T+1}, s{S_T+1}, s{S_T+2}")
        g(f"s_cmp_eq_u32 s{S_T}, 3")
        g(f"s_cselect_b32 s{S_OS+2}, 0, s{S_OS+2}")
        g(f"buffer_load_dword v23, v20, s[{S_OS}:{S_OS+3}], s{S_T+1} offen{o.pffl}")
        npf += 1
    if o.stamp: g("s_memtime s[88:89]")
    g(f"s_waitcnt vmcnt({14 + npf})")
    if o.stamp: g("s_memtime s[90:91]")
    g(f"s_waitcnt vmcnt({6 + npf})")
    if o.stamp: g("s_memtime s[92:93]")
    g("s_barrier")
    w_stage(); x_chunk(); w_stage()
    if o.codepf:
        g("s_getpc_b64 s[94:95]")
        g.label("L_pc")
        g("s_add_u32 s94, s94, L_loop-L_pc")
        g("s_addc_u32 s95, s95, 0")
        g("v_lshlrev_b32 v20, 7, v0")
        g("v_min_u32 v23, L_end-L_loop, v20")
        g("global_load_dword v21, v23, s[94:95]")
        g("v_add_u32 v20, 8192, v20")
        g("v_min_u32 v20, L_end-L_loop, v20")
        g("global_load_dword v22, v20, s[94:95]")
    g(f"s_mov_b32 s{S_CNT}, 4")
    if npf:
        pass
    g.label("L_ld_loop")
    g(f"s_cmp_lt_u32 s{S_CNT}, 32")
    g(f"s_cselect_b32 s{S_XS+2}, s{S_XN}, 0")
    g(f"s_cselect_b32 s{S_WS+2}, s{S_WN}, 0")
    def lstamp(k):
        if o.stamp:
            g("s_memrealtime s[80:81]")
            g("s_memtime s[82:83]")
            g(f"s_add_u32 m0, s{S_CNT}, {k - 4}")
            g("s_waitcnt lgkmcnt(0)")
            g("v_writelane_b32 v30, s80, m0")
            g("v_writelane_b32 v31, s82, m0")
    g("s_waitcnt vmcnt(20)")
    g("s_barrier")
    if not o.nodma: w_stage()
    lstamp(0)
    g("s_waitcnt vmcnt(12)")
    g("s_barrier")
    if not o.nodma: x_chunk(); w_stage()
    lstamp(1)
    g(f"s_add_u32 s{S_CNT}, s{S_CNT}, 2")
    g(f"s_cmp_lt_u32 s{S_CNT}, 36")
    g("s_cbranch_scc1 L_ld_loop")
    if o.stamp:
        g(f"s_lshl_b32 s{S_T+1}, s2, 2")
        g(f"s_add_u32 s{S_T+1}, s{S_T+1}, s{S_T}")
        g(f"s_lshl_b32 s{S_T+1}, s{S_T+1}, 8")
        g(f"s_add_u32 s{S_T+1}, s{S_T+1}, 65536")
        g(f"s_mov_b32 s{S_PS}, s54")
        g(f"s_mov_b32 s{S_PS+1}, s55")
        g(f"s_mov_b32 s{S_PS+2}, 0x100000")
        g(f"v_lshlrev_b32 v29, 2, v0")
        g("s_mov_b64 exec, 0xffffffff")
        g(f"buffer_store_dword v30, v29, s[{S_PS}:{S_PS+3}], s{S_T+1} offen")
        g(f"buffer_store_dword v31, v29, s[{S_PS}:{S_PS+3}], s{S_T+1} offen offset:128")
        for i, r in enumerate((84, 86, 88, 90, 92)):
            g(f"s_sub_u32 s{r}, s{r}, s{S_STAMP}")
            g(f"v_writelane_b32 v32, s{r}, {i}")
        g(f"s_add_u32 s{S_T+1}, s{S_T+1}, 262144")
        g(f"buffer_store_dword v32, v29, s[{S_PS}:{S_PS+3}], s{S_T+1} offen")
        g("s_cmp_eq_u32 s2, 100")
        g("s_cbranch_scc0 L_nodbg1")
        g(f"s_cmp_eq_u32 s{S_T}, 1")
        g("s_cbranch_scc0 L_nodbg1")
        g(f"s_mov_b32 s{S_PS}, s96")
        g(f"s_mov_b32 s{S_PS+1}, s97")
        g(f"s_mov_b32 s{S_PS+2}, 256")
        g("s_mov_b64 exec, 31")
        g(f"buffer_store_dword v32, v29, s[{S_PS}:{S_PS+3}], 0 offen offset:32")
        g.label("L_nodbg1")
    g("s_endpgm")

    g.label("L_consumer")
    g(f"s_mov_b32 s{S_PS+2}, 2048")
    g(f"v_lshrrev_b32 v{V_T}, 4, v0")
    g(f"v_lshlrev_b32 v{V_T}, 3, v{V_T}")
    g(f"s_lshl_b32 s{S_T+1}, s{S_T}, 6")
    g(f"s_add_u32 s{S_T+1}, s{S_T+1}, s{S_N0}")
    g(f"v_add_u32 v{V_T}, s{S_T+1}, v{V_T}")
    g("s_waitcnt lgkmcnt(0)")
    V_RAW = V_XB
    nraw = NBN // 2
    for pi in range(4):
        g(f"s_mov_b32 s{S_PS}, s{44+2*pi}")
        g(f"s_mov_b32 s{S_PS+1}, s{45+2*pi}")
        for d in range(2):
            g(f"buffer_load_dwordx2 {vr(V_RAW+pi*nraw+2*d,2)}, v{V_T}, s[{S_PS}:{S_PS+3}], 0 offen offset:{32*d}")
    g(f"v_and_b32 v{V_T}, 15, v0")
    g(f"v_lshrrev_b32 v{V_T+1}, 1, v{V_T}")
    g(f"v_lshrrev_b32 v{V_T+2}, 4, v0")
    g(f"v_xor_b32 v{V_T+1}, v{V_T+1}, v{V_T+2}")
    g(f"v_lshlrev_b32 v{V_T+1}, 4, v{V_T+1}")
    g(f"v_lshl_add_u32 v{V_XA[0]}, v{V_T}, 7, v{V_T+1}")
    g(f"v_xor_b32 v{V_XA[1]}, 64, v{V_XA[0]}")
    g(f"v_bfe_u32 v{V_T}, v0, 2, 2")
    g(f"v_xor_b32 v{V_T+1}, s{S_T}, v{V_T}")
    g(f"v_lshlrev_b32 v{V_T+1}, 6, v{V_T+1}")
    g(f"v_lshl_add_u32 v{V_T+1}, v{V_T}, 8, v{V_T+1}")
    g(f"v_mul_u32_u24 v{V_T+3}, {WREG}, v{V_T+2}")
    g(f"v_add_u32 v{V_T+1}, v{V_T+1}, v{V_T+3}")
    g(f"v_and_b32 v{V_T+2}, 1, v{V_T+2}")
    g(f"v_lshl_add_u32 v{V_T+1}, v{V_T+2}, 5, v{V_T+1}")
    g(f"v_and_b32 v{V_T+2}, 3, v0")
    g(f"v_lshl_add_u32 v{V_T+1}, v{V_T+2}, 3, v{V_T+1}")
    g(f"v_add_u32 v{V_WA[0]}, {WBASE}, v{V_T+1}")
    g(f"v_xor_b32 v{V_WA[1]}, 32, v{V_WA[0]}")
    g(f"s_add_u32 s{S_T+1}, s{S_B0}, s{S_N0}")
    g(f"s_add_u32 s{S_OS}, s52, s{S_T+1}")
    g(f"s_addc_u32 s{S_OS+1}, s53, 0")
    g(f"s_sub_u32 s{S_OS+2}, 16777216, s{S_T+1}")
    g(f"v_and_b32 v{V_T}, 15, v0")
    g(f"v_lshlrev_b32 v{V_T}, 14, v{V_T}")
    g(f"v_bfe_u32 v{V_T+1}, v0, 4, 1")
    g(f"v_lshl_add_u32 v{V_T}, v{V_T+1}, 5, v{V_T}")
    g(f"v_lshrrev_b32 v{V_T+1}, 5, v0")
    g(f"v_lshl_add_u32 v{V_T}, v{V_T+1}, 4, v{V_T}")
    g(f"s_lshl_b32 s{S_T+1}, s{S_T}, 6")
    g(f"v_add_u32 v{V_OUT}, s{S_T+1}, v{V_T}")
    for i in range(128):
        g(f"v_accvgpr_write_b32 a{i}, 0" if o.agpr else f"v_mov_b32 v{V_ACC+i}, 0")
    g("s_waitcnt vmcnt(0)")
    M_, V_, G_, B_ = (V_RAW + i * nraw for i in range(4))
    TA, TB = V_WB[1], V_WB[1] + 1
    g(f"s_mov_b32 s{S_T+1}, 0x3727c5ac")
    def unpack(dst, src, hi):
        if hi: g(f"v_and_b32 v{dst}, 0xffff0000, v{src}")
        else:  g(f"v_lshlrev_b32 v{dst}, 16, v{src}")
    for k in range(nraw):
        lo, hi = V_SC + 2 * k, V_SC + 2 * k + 1
        unpack(lo, V_ + k, 0); unpack(hi, V_ + k, 1)
        g(f"v_add_f32 v{lo}, s{S_T+1}, v{lo}")
        g(f"v_add_f32 v{hi}, s{S_T+1}, v{hi}")
        g(f"v_cvt_pk_bf16_f32 v{TA}, v{lo}, v{hi}")
        unpack(lo, TA, 0); unpack(hi, TA, 1)
        g(f"v_sqrt_f32 v{lo}, v{lo}")
        g(f"v_sqrt_f32 v{hi}, v{hi}")
        g("s_nop 0")
        g(f"v_cvt_pk_bf16_f32 v{TA}, v{lo}, v{hi}")
        unpack(lo, TA, 0); unpack(hi, TA, 1)
        g(f"v_rcp_f32 v{lo}, v{lo}")
        g(f"v_rcp_f32 v{hi}, v{hi}")
        g("s_nop 0")
        g(f"v_cvt_pk_bf16_f32 v{TA}, v{lo}, v{hi}")
        unpack(lo, TA, 0); unpack(hi, TA, 1)
        unpack(TA, G_ + k, 0); unpack(TB, G_ + k, 1)
        g(f"v_mul_f32 v{lo}, v{lo}, v{TA}")
        g(f"v_mul_f32 v{hi}, v{hi}, v{TB}")
        g(f"v_cvt_pk_bf16_f32 v{TA}, v{lo}, v{hi}")
        unpack(lo, TA, 0); unpack(hi, TA, 1)
        slo, shi = V_SH + 2 * k, V_SH + 2 * k + 1
        unpack(slo, B_ + k, 0); unpack(shi, B_ + k, 1)
        unpack(TA, M_ + k, 0); unpack(TB, M_ + k, 1)
        g(f"v_fma_f32 v{slo}, -v{TA}, v{lo}, v{slo}")
        g(f"v_fma_f32 v{shi}, -v{TB}, v{hi}, v{shi}")

    def xread(p, f):
        s, q = f >> 1, f & 1
        buf = V_XB + (f % NXB) * 4
        return f"ds_read_b128 {vr(buf,4)}, v{V_XA[p]} offset:{s * 4096 + q * 2048}"
    def wread(p, t, d, h):
        dst = wfrag(p, t, d) + 2 * h
        return f"ds_read_b64_tr_b16 {vr(dst,2)}, v{V_WA[d]} offset:{p * WSLOT + t*2048 + h*1024}"
    def group_mfmas(p, f):
        s, q = f >> 1, f & 1
        buf = V_XB + (f % NXB) * 4
        out = []
        for t in range(3):
            sp = s - t + 1
            if not 0 <= sp <= 7: continue
            for d in range(2):
                a = acc(sp, q, d)
                out.append((f"v_mfma_f32_16x16x32_bf16 {vr(a,4)}, {vr(wfrag(p,t,d),4)}, {vr(buf,4)}, {vr(a,4)}",
                            [("x", f), ("w", t, d, 0), ("w", t, d, 1)]))
        return out
    worder = [(t, d, h) for t in range(3) for d in range(2) for h in range(2)]

    def stage_stream(p):
        items = []
        groups = [group_mfmas(p, f) for f in range(16)]
        nm = sum(len(x) for x in groups)
        fill = [[] for _ in range(nm)]
        start = [sum(len(x) for x in groups[:f]) for f in range(17)]
        fb = 16 - L
        for f in range(16):
            if f + L < 16:
                fill[start[f]].append(("l", xread(p, f + L), ("x", f + L, 0)))
        ib = start[fb + 1] - 1
        fill[ib].append(("bar",))
        fill[ib].append(("l", xread(1 - p, 0), ("x", 0, 1)))
        taken = set()
        for f in range(fb + 1, 16):
            fill[start[f]].append(("l", xread(1 - p, f + L - 16), ("x", f + L - 16, 1)))
            taken.add(start[f])
        free = [i for i in range(ib + 1, nm) if i not in taken]
        for k, w_ in enumerate(worder):
            fill[free[min(k // o.wper, len(free) - 1)]].append(("l", wread(1 - p, *w_), ("w",) + w_ + (1,)))
        fill[start[15 - L] + 1].append(("i", f"v_xor_b32 v{V_XA[p]}, {XSLOT}, v{V_XA[p]}"))
        if p == 1:
            fill[1].append(("i", f"v_add_u32 v{V_WA[0]}, s{S_DELTA}, v{V_WA[0]}"))
            fill[2].append(("i", f"v_add_u32 v{V_WA[1]}, s{S_DELTA}, v{V_WA[1]}"))
            fill[nm - 4].append(("i", f"s_sub_u32 s{S_DELTA}, 0, s{S_DELTA}"))
            fill[nm - 3].append(("i", f"s_add_u32 s{S_CNT}, s{S_CNT}, 2"))
            fill[nm - 2].append(("i", f"s_cmp_lt_u32 s{S_CNT}, 32"))
        i = 0
        for f in range(16):
            for (txt, needs) in groups[f]:
                items.append(("m", txt, needs))
                items += fill[i]
                i += 1
        return items

    streams = [stage_stream(0), stage_stream(1)]
    def place_waits():
        seq = []; done = -1; out = None
        for it in range(3):
            cur = []
            for p in range(2):
                st = 2 * it + p
                for item in streams[p]:
                    if item[0] == "m":
                        need = -1
                        for n_ in item[2]:
                            key = n_ + (st,)
                            idx = [i for i, t_ in enumerate(seq) if t_ == key]
                            if idx: need = max(need, idx[-1])
                            else: assert st == 0, key
                        if need > done:
                            cnt = min(len(seq) - 1 - need, 15)
                            cur.append(f"s_waitcnt lgkmcnt({cnt})")
                            done = len(seq) - 1 - cnt
                        cur.append(item[1])
                    elif item[0] == "l":
                        tag = item[2]
                        seq.append(tag[:-1] + (st + tag[-1],))
                        cur.append(item[1])
                    elif item[0] == "bar":
                        cur.append("s_waitcnt lgkmcnt(0)")
                        cur.append("s_barrier")
                        done = len(seq) - 1
                    else:
                        cur.append(item[1])
            if it == 2: assert cur == out
            out = cur
        return out
    body = place_waits()
    if o.nolds:
        body = [b for b in body if not (b.startswith("ds_read") or b.startswith("s_waitcnt lgkmcnt"))]
    if o.keep < 0:
        body = [b for b in body if not b.startswith("v_mfma")]

    if o.agpr:
        import re
        def ren(b):
            if not b.startswith("v_mfma"): return b
            return re.sub(r"v\[(\d+):(\d+)\]", lambda m: f"a[{int(m.group(1))-128}:{int(m.group(2))-128}]" if int(m.group(1)) >= 128 else m.group(0), b)
        body = [ren(b) for b in body]
    g("s_barrier")
    if o.stamp:
        g(f"s_memtime s[{S_STAMP+4}:{S_STAMP+5}]")
        g(f"s_memrealtime s[{S_STAMP+14}:{S_STAMP+15}]")
        g("s_waitcnt lgkmcnt(0)")
    for w_ in worder: g(wread(0, *w_))
    for f in range(L): g(xread(0, f))
    g(f"s_mov_b32 s{S_DELTA}, {2*WSLOT}")
    g(f"s_mov_b32 s{S_CNT}, 0")
    g("s_waitcnt lgkmcnt(0)")
    g.raw(".p2align 6")
    g.label("L_loop")
    for s_ in body: g(s_)
    g("s_cbranch_scc1 L_loop")
    if o.stamp:
        g(f"s_memtime s[{S_STAMP+6}:{S_STAMP+7}]")
        g(f"s_memrealtime s[{S_STAMP+16}:{S_STAMP+17}]")
    g("s_nop 15")
    g(f"s_mov_b32 s{S_T+2}, 0xbfb8aa3b")
    ui = 0
    for sp in range(8):
        for bg in range(2):
            regs = [(acc(sp, bg, d) + j, d * 4 + j) for d in range(2) for j in range(4)]
            soff = (bg * 128 + sp) * 2048
            n = len(regs)
            E = V_WB[0] + (ui % 2) * 16
            P = V_XB + (ui % 4) * 8
            if o.agpr:
                nregs = []
                for i, (a, k) in enumerate(regs):
                    g(f"v_accvgpr_read_b32 v{112+i}, a{a-128}")
                    nregs.append((112 + i, k))
                regs = nregs
            for (a, k) in regs: g(f"v_fma_f32 v{a}, v{a}, v{V_SC+k}, v{V_SH+k}")
            for i, (a, k) in enumerate(regs): g(f"v_mul_f32 v{E+i}, s{S_T+2}, v{a}")
            for i in range(n): g(f"v_exp_f32 v{E+i}, v{E+i}")
            for i in range(n): g(f"v_add_f32 v{E+i}, 1.0, v{E+i}")
            for i in range(n): g(f"v_rcp_f32 v{E+i}, v{E+i}")
            for i, (a, k) in enumerate(regs): g(f"v_mul_f32 v{a}, v{a}, v{E+i}")
            for i in range(4):
                g(f"v_cvt_pk_bf16_f32 v{P+i}, v{regs[2*i][0]}, v{regs[2*i+1][0]}")
            g(f"s_mov_b32 s{S_T+3}, {soff}")
            g("s_nop 0")
            g(f"v_permlane16_swap_b32 v{P}, v{P+2}")
            g(f"v_permlane16_swap_b32 v{P+1}, v{P+3}")
            g(f"buffer_store_dwordx4 {vr(P,4)}, v{V_OUT}, s[{S_OS}:{S_OS+3}], s{S_T+3} offen{o.stflags}")
            ui += 1
    if o.stamp:
        g(f"s_memtime s[{S_STAMP+8}:{S_STAMP+9}]")
        g("s_waitcnt vmcnt(0)")
        g(f"s_memtime s[{S_STAMP+10}:{S_STAMP+11}]")
        g(f"s_memrealtime s[{S_STAMP+12}:{S_STAMP+13}]")
        g("s_waitcnt lgkmcnt(0)")
        g(f"s_lshl_b32 s{S_T+1}, s2, 2")
        g(f"s_add_u32 s{S_T+1}, s{S_T+1}, s{S_T}")
        g(f"s_lshl_b32 s{S_T+1}, s{S_T+1}, 6")
        g(f"s_mov_b32 s{S_PS}, s54")
        g(f"s_mov_b32 s{S_PS+1}, s55")
        g(f"s_mov_b32 s{S_PS+2}, 0x100000")
        g(f"v_mov_b32 v{V_T}, s{S_T+1}")
        for i in range(14):
            g(f"v_mov_b32 v{V_WB[0]+i}, s{S_STAMP+i}")
        g(f"v_mov_b32 v{V_WB[0]+14}, s{S_STAMP+14}")
        g(f"v_mov_b32 v{V_WB[0]+15}, s{S_STAMP+16}")
        g("s_mov_b64 exec, 1")
        for i in range(4):
            g(f"buffer_store_dwordx4 {vr(V_WB[0]+4*i,4)}, v{V_T}, s[{S_PS}:{S_PS+3}], 0 offen offset:{16*i}")
        g("s_cmp_eq_u32 s2, 100")
        g("s_cbranch_scc0 L_end")
        g(f"s_cmp_eq_u32 s{S_T}, 1")
        g("s_cbranch_scc0 L_end")
        g(f"s_mov_b32 s{S_PS}, s96")
        g(f"s_mov_b32 s{S_PS+1}, s97")
        g(f"s_mov_b32 s{S_PS+2}, 256")
        S = S_STAMP
        for i, (a, b) in enumerate([(4, 0), (6, 4), (8, 6), (10, 8), (14, 2), (16, 14), (12, 16), (12, 2)]):
            g(f"s_sub_u32 s{S_T+1}, s{S+a}, s{S+b}")
            g(f"v_mov_b32 v{20+i}, s{S_T+1}")
        g("v_mov_b32 v19, 0")
        g(f"buffer_store_dwordx4 v[20:23], v19, s[{S_PS}:{S_PS+3}], 0 offen")
        g(f"buffer_store_dwordx4 v[24:27], v19, s[{S_PS}:{S_PS+3}], 0 offen offset:16")
    g.label("L_end")
    g("s_endpgm")
    g.raw('.section .rodata,"a"')
    g.raw(".p2align 6")
    g.raw(f".amdhsa_kernel {KN}")
    g.raw("  .amdhsa_next_free_vgpr 256")
    g.raw("  .amdhsa_next_free_sgpr 100")
    g.raw("  .amdhsa_accum_offset %d" % (128 if o.agpr else 256))
    g.raw("  .amdhsa_group_segment_fixed_size 0")
    g.raw("  .amdhsa_kernarg_size 72")
    g.raw("  .amdhsa_user_sgpr_count 2")
    g.raw("  .amdhsa_user_sgpr_kernarg_segment_ptr 1")
    g.raw("  .amdhsa_system_sgpr_workgroup_id_x 1")
    g.raw(".end_amdhsa_kernel")
    return g.text()

if __name__ == "__main__":
    ap = argparse.ArgumentParser()
    ap.add_argument("--lead", type=int, default=6)
    ap.add_argument("--wper", type=int, default=1)
    ap.add_argument("--stflags", default="")
    ap.add_argument("--xfl", default="")
    ap.add_argument("--wfl", default="")
    ap.add_argument("--pffl", default="")
    ap.add_argument("--stamp", action="store_true")
    ap.add_argument("--nolds", action="store_true")
    ap.add_argument("--nodma", action="store_true")
    ap.add_argument("--keep", type=int, default=0)
    ap.add_argument("--only", default="")
    ap.add_argument("--rot", type=int, default=0)
    ap.add_argument("--rotsel", default="m")
    ap.add_argument("--map", default="8x4")
    ap.add_argument("--pf", action="store_true")
    ap.add_argument("--agpr", action="store_true")
    ap.add_argument("--codepf", action="store_true")
    ap.add_argument("-o", default="-")
    o = ap.parse_args()
    for k in ("stflags", "xfl", "wfl", "pffl"):
        if getattr(o, k): setattr(o, k, " " + getattr(o, k))
    t = gen(o)
    if o.o == "-": sys.stdout.write(t)
    else: open(o.o, "w").write(t)
```

```python
import re
TRANS = ("v_exp_f32", "v_rcp_f32", "v_sqrt_f32", "v_rsq_f32", "v_log_f32")
def regs(tok):
    tok = tok.strip().lstrip("-")
    m = re.fullmatch(r"v\[(\d+):(\d+)\]", tok)
    if m: return list(range(int(m.group(1)), int(m.group(2)) + 1))
    m = re.fullmatch(r"v(\d+)", tok)
    if m: return [int(m.group(1))]
    return []
def parse(line):
    op, _, rest = line.partition(" ")
    toks = [t.strip() for t in rest.split(",")]
    toks = [t.split(" ")[0] for t in toks]
    return op, toks
def pad(lines, mfma_d=8):
    out = []; pos = 0
    mw = {}; tw = {}; vw = {}; sd = {}
    n_ins = 0
    for line in lines:
        op, toks = parse(line)
        need = 0
        def chk(tab, rs, d):
            nonlocal need
            for r in rs:
                if r in tab: need = max(need, d - (pos - tab[r] - 1))
        if op.startswith("v_mfma"):
            rd = regs(toks[1]) + regs(toks[2]); c = regs(toks[3])
            chk(vw, rd + c, 2)
            chk(mw, rd, mfma_d)
            wr = []
        elif op.startswith("v_permlane"):
            rd = regs(toks[0]) + regs(toks[1]); wr = rd
            chk(vw, rd, 2); chk(mw, rd, mfma_d); chk(sd, wr, 2)
        elif op.startswith("v_"):
            wr = regs(toks[0]); rd = [r for t in toks[1:] for r in regs(t)]
            chk(mw, rd + wr, mfma_d); chk(sd, wr, 2)
            if op not in TRANS: chk(tw, rd, 1)
        elif op.startswith("buffer_store") or op.startswith("ds_write"):
            rd = [r for t in toks[:2] for r in regs(t)]; wr = []
            chk(mw, rd, mfma_d)
        elif op.startswith("ds_read") or op.startswith("buffer_load"):
            rd = []; wr = []
            chk(mw, regs(toks[0]), mfma_d)
        else:
            rd = []; wr = []
        if need > 0:
            out.append(f"s_nop {need - 1}"); pos += need; n_ins += 1
        out.append(line)
        if op.startswith("v_mfma"):
            for r in regs(toks[0]): mw[r] = pos
        elif op.startswith("v_"):
            for r in wr:
                vw[r] = pos
                if op in TRANS: tw[r] = pos
                else: tw.pop(r, None)
        elif op.startswith("buffer_store"):
            for r in regs(toks[0]): sd[r] = pos
        pos += (int(toks[0]) + 1) if op == "s_nop" else 1
    return out, n_ins
```

```python
import sys, argparse
from gen import HEADER, KN, G, vr
import hz

XSLOT = 32768
WBASE = 65536
WSLOT = 24576
WREG = 6144

def gen(o):
    g = G()
    L = o.lead
    NXB = 8
    V_XD, V_WD, V_TX = 1, 2, 3
    V_XA = [6, 7]
    V_WA = [8, 9]
    V_XA2 = 1
    V_OUT = 11
    V_T = 12
    V_SC, V_SH = 16, 24
    V_E = [32, 32]
    V_W2 = [40, 44, 72, 76, 2, 12]
    V_XB = 48
    V_WB = [80, 104]
    V_ACC = 128
    S_XS, S_WS, S_OS, S_PS = 8, 12, 16, 20
    S_WAVE, S_B0, S_N0 = 24, 25, 26
    S_MX, S_MW = 27, 28
    S_DELTA, S_CNT = 29, 30
    S_WO = [32, 33, 34, 35, 36, 37]
    S_K = 38
    S_T = 40
    S_XO = [None, 56, 57, 58]
    S_WLIM = 59
    S_STAMP = 60
    S_SO = 78

    def acc(sp, bg, d): return V_ACC + ((sp * 2 + bg) * 2 + d) * 4
    def wfrag(p, t, d): return V_WB[p] + (t * 2 + d) * 4 if p < 2 else V_W2[t * 2 + d]

    g.raw(HEADER + f"; @launch grid=(256,1,1) block=(512,1,1) lds=163840")
    g.raw('.amdgcn_target "amdgcn-amd-amdhsa--gfx950"')
    g.raw(".text")
    g.raw(f".globl {KN}")
    g.raw(".p2align 8")
    g.raw(f".type {KN},@function")
    g.label(KN)
    g("s_cmp_ge_u32 s2, 256")
    g("s_cbranch_scc1 L_end")
    if o.stamp:
        g(f"s_memtime s[{S_STAMP}:{S_STAMP+1}]")
        g(f"s_memrealtime s[{S_STAMP+2}:{S_STAMP+3}]")
    g("s_load_dwordx4 s[4:7], s[0:1], 0")
    g("s_load_dwordx8 s[44:51], s[0:1], 16")
    g("s_load_dwordx2 s[52:53], s[0:1], 48")
    if o.stamp:
        g("s_load_dwordx2 s[54:55], s[0:1], 64")
    g(f"v_lshrrev_b32 v{V_T}, 6, v0")
    if o.codepf:
        g("s_getpc_b64 s[94:95]")
        g.label("L_pc")
        g(f"v_lshlrev_b32 v{V_T+1}, 7, v0")
        g(f"v_cmp_gt_u32 vcc, L_end-L_pc, v{V_T+1}")
        g("s_and_saveexec_b64 s[92:93], vcc")
        g("s_cbranch_execz L_nopf")
        g(f"global_load_dword v10, v{V_T+1}, s[94:95]")
        g.label("L_nopf")
        g("s_mov_b64 exec, s[92:93]")
    g(f"v_readfirstlane_b32 s{S_WAVE}, v{V_T}")
    g("v_and_b32 v0, 63, v0")
    g("s_and_b32 s3, s2, 7")
    g(f"s_lshr_b32 s{S_T}, s2, 3")
    g(f"s_lshr_b32 s{S_B0}, s3, 1")
    g(f"s_lshl_b32 s{S_B0}, s{S_B0}, 3")
    g(f"s_lshr_b32 s{S_T+1}, s{S_T}, 2")
    g(f"s_add_u32 s{S_B0}, s{S_B0}, s{S_T+1}")
    g(f"s_and_b32 s{S_N0}, s3, 1")
    g(f"s_lshl_b32 s{S_N0}, s{S_N0}, 2")
    g(f"s_and_b32 s{S_T+1}, s{S_T}, 3")
    g(f"s_add_u32 s{S_N0}, s{S_N0}, s{S_T+1}")
    g(f"s_lshl_b32 s{S_B0}, s{S_B0}, 19")
    g(f"s_lshl_b32 s{S_N0}, s{S_N0}, 8")
    g(f"s_and_b32 s{S_T}, s{S_WAVE}, 3")
    g(f"s_cmp_lt_u32 s{S_WAVE}, 4")
    g("s_cbranch_scc1 L_consumer")

    g(f"v_lshrrev_b32 v{V_T}, 4, v0")
    g(f"s_and_b32 s{S_T+2}, s{S_T}, 1")
    g(f"s_lshl_b32 s{S_T+3}, s{S_T+2}, 1")
    g(f"v_lshl_add_u32 v{V_T+1}, v{V_T}, 2, s{S_T+3}")
    g(f"v_xor_b32 v{V_T+1}, v{V_T+1}, v0")
    g(f"v_and_b32 v{V_T+1}, 15, v{V_T+1}")
    g(f"v_lshlrev_b32 v{V_T+1}, 4, v{V_T+1}")
    g(f"v_lshl_add_u32 v{V_WD}, v{V_T}, 11, v{V_T+1}")
    g(f"s_lshl_b32 s{S_T+1}, s{S_T}, 14")
    g(f"v_add_u32 v{V_WD}, s{S_T+1}, v{V_WD}")
    g(f"s_lshl_b32 s{S_T+3}, s{S_T+2}, 2")
    g(f"v_xor_b32 v{V_T+1}, v{V_T}, v0")
    g(f"v_xor_b32 v{V_T+1}, s{S_T+3}, v{V_T+1}")
    g(f"v_and_b32 v{V_T+1}, 7, v{V_T+1}")
    g(f"v_lshlrev_b32 v{V_T+1}, 4, v{V_T+1}")
    g(f"v_lshrrev_b32 v{V_T+2}, 3, v0")
    g(f"v_lshl_add_u32 v{V_XD}, v{V_T+2}, 14, v{V_T+1}")
    g(f"s_lshl_b32 s{S_T+1}, s{S_T}, 17")
    g(f"v_add_u32 v{V_XD}, s{S_T+1}, v{V_XD}")
    for j in range(1, 6):
        t, qq = j >> 1, j & 1
        g(f"s_mov_b32 s{S_WO[j]}, {t * 2097152 + qq * 8192 - (j % 4) * 1024}")
    for i in range(1, 4):
        g(f"s_movk_i32 s{S_XO[i]}, {i * 4096}")
    g(f"s_lshl_b32 s{S_MX}, s{S_T}, 10")
    g(f"s_mul_i32 s{S_MW}, s{S_T}, {WREG}")
    g(f"s_add_u32 s{S_MW}, s{S_MW}, {WBASE}")
    g(f"s_add_u32 s{S_WLIM}, s{S_MW}, {4*WSLOT}")
    g(f"s_mov_b32 s{S_XS+3}, 0x20000")
    g(f"s_mov_b32 s{S_WS+3}, 0x20000")
    g(f"s_sub_u32 s{S_XS+2}, 16777216, s{S_B0}")
    g(f"s_sub_u32 s{S_WS+2}, 6291456, s{S_N0}")
    if o.stamp: g("s_memtime s[84:85]")
    g("s_waitcnt lgkmcnt(0)")
    if o.stamp: g("s_memtime s[86:87]")
    g(f"s_add_u32 s{S_WS}, s6, s{S_N0}")
    g(f"s_addc_u32 s{S_WS+1}, s7, 0")
    g(f"s_add_u32 s{S_XS}, s4, s{S_B0}")
    g(f"s_addc_u32 s{S_XS+1}, s5, 0")
    xs = f"s[{S_XS}:{S_XS+3}]"; ws = f"s[{S_WS}:{S_WS+3}]"
    def ld(v, srd, so, off, fl=""):
        offs = f" offset:{off}" if off else ""
        return f"buffer_load_dwordx4 v{v}, {srd}, {so} offen{offs}{fl} lds"
    def x_chunk(s0=0, s1=8):
        for s in range(s0, s1):
            c = s * 4096 - (s & 1) * 2048
            g(f"s_add_u32 m0, s{S_MX}, {c}" if c else f"s_mov_b32 m0, s{S_MX}")
            g("s_nop 0")
            g(ld(V_XD, xs, "0" if (s >> 1) == 0 else f"s{S_XO[s >> 1]}", (s & 1) * 2048))
        if s1 < 8: return
        g(f"s_add_u32 s{S_XS}, s{S_XS}, 128")
        g(f"s_addc_u32 s{S_XS+1}, s{S_XS+1}, 0")
        g(f"s_sub_u32 s{S_XS+2}, s{S_XS+2}, 128")
        g(f"s_xor_b32 s{S_MX}, s{S_MX}, {XSLOT}")
    def w_stage():
        for j in range(6):
            if j == 0: g(f"s_mov_b32 m0, s{S_MW}"); g("s_nop 0")
            if j == 4: g(f"s_add_u32 m0, s{S_MW}, 4096"); g("s_nop 0")
            g(ld(V_WD, ws, f"s{S_WO[j]}" if j else "0", (j % 4) * 1024))
        g(f"s_add_u32 s{S_WS}, s{S_WS}, 65536")
        g(f"s_addc_u32 s{S_WS+1}, s{S_WS+1}, 0")
        g(f"s_sub_u32 s{S_WS+2}, s{S_WS+2}, 65536")
        g(f"s_add_u32 s{S_MW}, s{S_MW}, {WSLOT}")
        g(f"s_cmp_eq_u32 s{S_MW}, s{S_WLIM}")
        g(f"s_cselect_b32 s{S_T+1}, {4*WSLOT}, 0")
        g(f"s_sub_u32 s{S_MW}, s{S_MW}, s{S_T+1}")
    def lstamp(k):
        if o.stamp:
            g("s_memrealtime s[80:81]")
            g("s_memtime s[82:83]")
            g(f"s_add_u32 m0, s{S_CNT}, {k}")
            g("s_waitcnt lgkmcnt(0)")
            g("v_writelane_b32 v30, s80, m0")
            g("v_writelane_b32 v31, s82, m0")
    n0 = len(g.lines)
    w_stage(); x_chunk(); w_stage(); w_stage(); x_chunk(); w_stage()
    seg = g.lines[n0:]; del g.lines[n0:]
    marks = {o.i0: 9, o.i1: 11, o.i2: 14}
    k = 0
    for ln in seg:
        g.lines.append(ln)
        if "buffer_load" in ln:
            k += 1
            for mk in sorted(set([o.i0, o.i1, o.i2])):
                pass
            for bi, (at, need) in enumerate(((o.i0, 9), (o.i1, 11), (o.i2, 14))):
                if k == at:
                    if o.stamp and bi == 0: g("s_memtime s[88:89]")
                    g(f"s_waitcnt vmcnt({k - need})")
                    if o.stamp and bi == 0: g("s_memtime s[90:91]")
                    if o.stamp and bi == 2: g("s_memtime s[92:93]")
                    g("s_barrier")
    g(f"s_mov_b32 s{S_CNT}, 0")
    g.label("L_ld_loop")
    g("s_waitcnt vmcnt(20)")
    g("s_barrier")
    w_stage()
    lstamp(0)
    g("s_waitcnt vmcnt(12)")
    g("s_barrier")
    x_chunk(); w_stage()
    lstamp(1)
    g(f"s_add_u32 s{S_CNT}, s{S_CNT}, 2")
    g(f"s_cmp_lt_u32 s{S_CNT}, 28")
    g("s_cbranch_scc1 L_ld_loop")
    g("s_waitcnt vmcnt(20)")
    g("s_barrier")
    lstamp(0)
    g("s_waitcnt vmcnt(0)")
    g("s_barrier")
    lstamp(1)
    if o.stamp:
        g(f"s_lshl_b32 s{S_T+1}, s2, 2")
        g(f"s_add_u32 s{S_T+1}, s{S_T+1}, s{S_T}")
        g(f"s_lshl_b32 s{S_T+1}, s{S_T+1}, 8")
        g(f"s_add_u32 s{S_T+1}, s{S_T+1}, 65536")
        g(f"s_mov_b32 s{S_PS}, s54")
        g(f"s_mov_b32 s{S_PS+1}, s55")
        g(f"s_mov_b32 s{S_PS+2}, 0x100000")
        g(f"s_mov_b32 s{S_PS+3}, 0x20000")
        g(f"v_lshlrev_b32 v29, 2, v0")
        g("s_mov_b64 exec, 0xffffffff")
        g(f"buffer_store_dword v30, v29, s[{S_PS}:{S_PS+3}], s{S_T+1} offen")
        g(f"buffer_store_dword v31, v29, s[{S_PS}:{S_PS+3}], s{S_T+1} offen offset:128")
        for i, r in enumerate((84, 86, 88, 90, 92)):
            g(f"s_sub_u32 s{r}, s{r}, s{S_STAMP}")
            g(f"v_writelane_b32 v32, s{r}, {i}")
        g(f"s_add_u32 s{S_T+1}, s{S_T+1}, 262144")
        g("s_mov_b64 exec, -1")
        g(f"buffer_store_dword v32, v29, s[{S_PS}:{S_PS+3}], s{S_T+1} offen")
    g("s_endpgm")

    g.label("L_consumer")
    g(f"s_mov_b32 s{S_PS+2}, 2048")
    g(f"s_mov_b32 s{S_PS+3}, 0x20000")
    g(f"s_mov_b32 s{S_OS+3}, 0x20000")
    g(f"v_lshrrev_b32 v{V_T+2}, 4, v0")
    g(f"s_lshl_b32 s{S_T+1}, s{S_T}, 6")
    g(f"s_add_u32 s{S_T+1}, s{S_T+1}, s{S_N0}")
    g(f"v_lshl_add_u32 v{V_T}, v{V_T+2}, 3, s{S_T+1}")
    g("s_waitcnt lgkmcnt(0)")
    V_RAW = 32
    nraw = 4
    for pi in range(4):
        g(f"s_mov_b32 s{S_PS}, s{44+2*pi}")
        g(f"s_mov_b32 s{S_PS+1}, s{45+2*pi}")
        for d in range(2):
            g(f"buffer_load_dwordx2 {vr(V_RAW+pi*nraw+2*d,2)}, v{V_T}, s[{S_PS}:{S_PS+3}], 0 offen offset:{32*d}")
    g(f"v_and_b32 v{V_T}, 15, v0")
    g(f"v_lshrrev_b32 v{V_T+1}, 1, v{V_T}")
    g(f"v_xor_b32 v{V_T+1}, v{V_T+1}, v{V_T+2}")
    g(f"v_lshlrev_b32 v{V_T+1}, 4, v{V_T+1}")
    g(f"v_lshl_add_u32 v{V_XA[0]}, v{V_T}, 7, v{V_T+1}")
    g(f"v_xor_b32 v{V_XA[1]}, 64, v{V_XA[0]}")
    g(f"v_lshlrev_b32 v{V_T}, 14, v{V_T}")
    g(f"v_bfe_u32 v{V_T+1}, v0, 4, 1")
    g(f"v_lshl_add_u32 v{V_T}, v{V_T+1}, 5, v{V_T}")
    g(f"v_lshrrev_b32 v{V_T+1}, 5, v0")
    g(f"v_lshl_add_u32 v{V_T}, v{V_T+1}, 4, v{V_T}")
    g(f"s_lshl_b32 s{S_T+1}, s{S_T}, 6")
    g(f"v_add_u32 v{V_OUT}, s{S_T+1}, v{V_T}")
    if o.fakeline:
        g(f"v_lshrrev_b32 v{V_T}, 3, v0")
        g(f"v_lshlrev_b32 v{V_T}, 11, v{V_T}")
        g(f"v_and_b32 v{V_T+1}, 7, v0")
        g(f"v_lshl_add_u32 v{V_T}, v{V_T+1}, 4, v{V_T}")
        g(f"s_and_b32 s{S_T+1}, s{S_T}, 1")
        g(f"s_lshl_b32 s{S_T+1}, s{S_T+1}, 7")
        g(f"s_lshr_b32 s{S_T+2}, s{S_T}, 1")
        g(f"s_lshl_b32 s{S_T+2}, s{S_T+2}, 14")
        g(f"s_add_u32 s{S_T+1}, s{S_T+1}, s{S_T+2}")
        g(f"v_add_u32 v{V_OUT}, s{S_T+1}, v{V_T}")
    g(f"v_bfe_u32 v{V_T}, v0, 2, 2")
    g(f"v_xor_b32 v{V_T+1}, s{S_T}, v{V_T}")
    g(f"v_lshlrev_b32 v{V_T+1}, 6, v{V_T+1}")
    g(f"v_lshl_add_u32 v{V_T+1}, v{V_T}, 8, v{V_T+1}")
    g(f"v_mul_u32_u24 v{V_T+3}, {WREG}, v{V_T+2}")
    g(f"v_add_u32 v{V_T+1}, v{V_T+1}, v{V_T+3}")
    g(f"v_and_b32 v{V_T+2}, 1, v{V_T+2}")
    g(f"v_lshl_add_u32 v{V_T+1}, v{V_T+2}, 5, v{V_T+1}")
    g(f"v_and_b32 v{V_T+2}, 3, v0")
    g(f"v_lshl_add_u32 v{V_T+1}, v{V_T+2}, 3, v{V_T+1}")
    g(f"v_add_u32 v{V_WA[0]}, {WBASE}, v{V_T+1}")
    g(f"v_xor_b32 v{V_WA[1]}, 32, v{V_WA[0]}")
    g(f"s_add_u32 s{S_T+1}, s{S_B0}, s{S_N0}")
    g(f"s_add_u32 s{S_OS}, s52, s{S_T+1}")
    g(f"s_addc_u32 s{S_OS+1}, s53, 0")
    g(f"s_sub_u32 s{S_OS+2}, 16777216, s{S_T+1}")
    g(f"s_mov_b32 s{S_K}, 0xbfb8aa3b")
    g(f"s_mov_b32 s{S_K+1}, 0xbfb8aa3b")
    for i in range(0, 128, 2):
        g(f"v_mov_b64 v[{V_ACC+i}:{V_ACC+i+1}], 0")
    bn_ops = []
    def gb(x): bn_ops.append(x)
    gb("s_waitcnt vmcnt(0)")
    M_, V_, G_, B_ = (V_RAW + i * nraw for i in range(4))
    TA, TB = V_T, V_T + 1
    gb(f"s_mov_b32 s{S_T+1}, 0x3727c5ac")
    def unpack(dst, src, hi):
        if hi: gb(f"v_and_b32 v{dst}, 0xffff0000, v{src}")
        else:  gb(f"v_lshlrev_b32 v{dst}, 16, v{src}")
    for k in range(nraw):
        lo, hi = V_SC + 2 * k, V_SC + 2 * k + 1
        unpack(lo, V_ + k, 0); unpack(hi, V_ + k, 1)
        gb(f"v_add_f32 v{lo}, s{S_T+1}, v{lo}")
        gb(f"v_add_f32 v{hi}, s{S_T+1}, v{hi}")
        gb(f"v_cvt_pk_bf16_f32 v{TA}, v{lo}, v{hi}")
        unpack(lo, TA, 0); unpack(hi, TA, 1)
        gb(f"v_sqrt_f32 v{lo}, v{lo}")
        gb(f"v_sqrt_f32 v{hi}, v{hi}")
        gb(f"v_cvt_pk_bf16_f32 v{TA}, v{lo}, v{hi}")
        unpack(lo, TA, 0); unpack(hi, TA, 1)
        gb(f"v_rcp_f32 v{lo}, v{lo}")
        gb(f"v_rcp_f32 v{hi}, v{hi}")
        gb(f"v_cvt_pk_bf16_f32 v{TA}, v{lo}, v{hi}")
        unpack(lo, TA, 0); unpack(hi, TA, 1)
        unpack(TA, G_ + k, 0); unpack(TB, G_ + k, 1)
        gb(f"v_mul_f32 v{lo}, v{lo}, v{TA}")
        gb(f"v_mul_f32 v{hi}, v{hi}, v{TB}")
        gb(f"v_cvt_pk_bf16_f32 v{TA}, v{lo}, v{hi}")
        unpack(lo, TA, 0); unpack(hi, TA, 1)
        slo, shi = V_SH + 2 * k, V_SH + 2 * k + 1
        unpack(slo, B_ + k, 0); unpack(shi, B_ + k, 1)
        unpack(TA, M_ + k, 0); unpack(TB, M_ + k, 1)
        gb(f"v_fma_f32 v{slo}, -v{TA}, v{lo}, v{slo}")
        gb(f"v_fma_f32 v{shi}, -v{TB}, v{hi}, v{shi}")
        for r in (lo, hi, slo, shi):
            gb(f"v_mul_f32 v{r}, s{S_K}, v{r}")

    def xread(p, f, slot):
        s, q = f >> 1, f & 1
        return f"ds_read_b128 {vr(V_XB + slot * 4,4)}, v{V_XA[p]} offset:{s * 4096 + q * 2048}"
    def wread(p, t, d, h, slot=None):
        dst = wfrag(p, t, d) + 2 * h
        slot = p if slot is None else slot
        return f"ds_read_b64_tr_b16 {vr(dst,2)}, v{V_WA[d]} offset:{slot * WSLOT + t*2048 + h*1024}"
    def group_mfmas(p, f, slot, xtag, wst):
        s, q = f >> 1, f & 1
        buf = V_XB + slot * 4
        out = []
        for t in range(3):
            sp = s - t + 1
            if not 0 <= sp <= 7: continue
            for d in range(2):
                a = acc(sp, q, d)
                out.append(("m", f"v_mfma_f32_16x16x32_bf16 {vr(a,4)}, {vr(wfrag(p,t,d),4)}, {vr(buf,4)}, {vr(a,4)}",
                            [xtag, ("w", t, d, 0, wst), ("w", t, d, 1, wst)], (sp, q)))
        return out
    worder = [(t, d, h) for t in range(3) for d in range(2) for h in range(2)]

    def stage_stream(p, st, first=False):
        items = []
        groups = [group_mfmas(p, f, f % NXB, ("x", f, st), st) for f in range(16)]
        nm = sum(len(x) for x in groups)
        fill = [[] for _ in range(nm)]
        start = [sum(len(x) for x in groups[:f]) for f in range(17)]
        fb = 16 - L
        for f in range(16):
            if f + L < 16:
                fill[start[f]].append(("l", xread(p, f + L, (f + L) % NXB), ("x", f + L, st)))
        ib = start[fb + 1] - 1
        fill[ib].append(("bar",))
        fill[ib].append(("l", xread(1 - p, 0, 0), ("x", 0, st + 1)))
        taken = set()
        for f in range(fb + 1, 16):
            fill[start[f]].append(("l", xread(1 - p, f + L - 16, (f + L - 16) % NXB), ("x", f + L - 16, st + 1)))
            taken.add(start[f])
        free = [i for i in range(ib + 1, nm) if i not in taken]
        for k, w_ in enumerate(worder):
            fill[free[k]].append(("l", wread(1 - p, *w_), ("w",) + w_ + (st + 1,)))
        fill[start[15 - L] + 1].append(("i", f"v_xor_b32 v{V_XA[p]}, {XSLOT}, v{V_XA[p]}"))
        if p == 1:
            fill[1].append(("i", f"v_add_u32 v{V_WA[0]}, s{S_DELTA}, v{V_WA[0]}"))
            fill[2].append(("i", f"v_add_u32 v{V_WA[1]}, s{S_DELTA}, v{V_WA[1]}"))
            fill[3].append(("i", f"s_sub_u32 s{S_DELTA}, 0, s{S_DELTA}"))
        elif first:
            fill[start[10 - L]].insert(0, ("bar_nowait",))
            ops = list(bn_ops); i = o.bn0
            while ops:
                budget = 2 - sum(1 for it in fill[i] if it[0] == "i")
                while ops and budget > 0:
                    c = 2 if ops[0].startswith(("v_sqrt", "v_rcp")) else (0 if ops[0].startswith("s_") else 1)
                    if c > budget and budget < 2: break
                    fill[i].append(("i", ops.pop(0))); budget -= c
                i += 1
        else:
            fill[nm - 3].append(("i", f"s_add_u32 s{S_CNT}, s{S_CNT}, 2"))
            fill[nm - 2].append(("i", f"s_cmp_lt_u32 s{S_CNT}, 28"))
        i = 0
        for f in range(16):
            for m in groups[f]:
                items.append(m)
                items += fill[i]
                i += 1
        return items

    class Q:
        def __init__(self): self.seq = []; self.done = -1
        def run(self, items, first=False):
            cur = []
            for item in items:
                if item[0] == "m":
                    need = -1
                    for key in item[2]:
                        idx = [i for i, t_ in enumerate(self.seq) if t_ == key]
                        if idx: need = max(need, idx[-1])
                        else: assert first, key
                    if need > self.done:
                        cnt = min(len(self.seq) - 1 - need, 15)
                        cur.append(f"s_waitcnt lgkmcnt({cnt})")
                        self.done = len(self.seq) - 1 - cnt
                    cur.append(item[1])
                elif item[0] == "l":
                    self.seq.append(item[2]); cur.append(item[1])
                elif item[0] == "bar":
                    cur.append("s_waitcnt lgkmcnt(0)"); cur.append("s_barrier")
                    self.done = len(self.seq) - 1
                elif item[0] == "bar_nowait":
                    cur.append("s_barrier")
                else:
                    cur.append(item[1])
            return cur
    q = Q()
    stage0 = q.run(stage_stream(0, 0, first=True), first=True)
    body = q.run(stage_stream(1, 1)) + q.run(stage_stream(0, 2))
    body2 = q.run(stage_stream(1, 3)) + q.run(stage_stream(0, 4))
    assert body == body2

    def unit_ops(sp, bg, ui, pk):
        A = [acc(sp, bg, d) + j for d in range(2) for j in range(4)]
        E = V_E[ui % 2]
        so = S_SO + ui % 4
        ops = []
        if pk:
            for i in range(0, 8, 2):
                ops.append((f"v_pk_fma_f32 {vr(A[i],2)}, {vr(A[i],2)}, {vr(V_SC+i,2)}, {vr(V_SH+i,2)}", 1))
        else:
            for i in range(8): ops.append((f"v_fma_f32 v{A[i]}, v{A[i]}, v{V_SC+i}, v{V_SH+i}", 1))
        for i in range(8): ops.append((f"v_exp_f32 v{E+i}, v{A[i]}", 2))
        if pk:
            for i in range(0, 8, 2):
                ops.append((f"v_pk_fma_f32 {vr(E+i,2)}, {vr(E+i,2)}, s[{S_K}:{S_K+1}], s[{S_K}:{S_K+1}]", 1))
        else:
            for i in range(8): ops.append((f"v_fma_f32 v{E+i}, v{E+i}, s{S_K}, s{S_K}", 1))
        for i in range(8): ops.append((f"v_rcp_f32 v{E+i}, v{E+i}", 2))
        if pk:
            for i in range(0, 8, 2):
                ops.append((f"v_pk_mul_f32 {vr(A[i],2)}, {vr(A[i],2)}, {vr(E+i,2)}", 1))
        else:
            for i in range(8): ops.append((f"v_mul_f32 v{A[i]}, v{A[i]}, v{E+i}", 1))
        P = A[0]
        for i in range(4): ops.append((f"v_cvt_pk_bf16_f32 v{P+i}, v{A[2*i]}, v{A[2*i+1]}", 1))
        ops.append((f"s_mov_b32 s{so}, {(bg * 128 + sp) * 2048 if not o.fakeline else (sp * 2 + bg) * 32768}", 0))
        ops.append((f"v_permlane16_swap_b32 v{P}, v{P+2}", 1))
        ops.append((f"v_permlane16_swap_b32 v{P+1}, v{P+3}", 1))
        ops.append((f"buffer_store_dwordx4 {vr(P,4)}, v{V_OUT}, s[{S_OS}:{S_OS+3}], s{so} offen{o.stflags}", 1))
        return ops

    tail = []
    pend = []
    if True:
        st0 = 5
        NT, LT = 6, 5
        wset = [1, 0, 2]; xpar = [1, 0, 1]
        order = [(0, 0), (0, 1), (0, 2), (0, 3), (1, 0), (1, 2), (0, 4), (0, 5), (2, 0), (2, 2),
                 (1, 1), (1, 3), (2, 1), (2, 3), (1, 4), (2, 4), (1, 5), (2, 5)]
        for f in range(6, 16):
            order += [(0, f), (1, f), (2, f)]
        assert L == 6 and len(order) == 48 and len(set(order)) == 48
        slot = {}
        for f in range(6): slot[(0, f)] = f
        freeat = {}
        for i, kf in enumerate(order):
            if kf in slot: freeat[slot[kf]] = i
        reads = []
        for i, kf in enumerate(order):
            if kf in slot and kf[0] == 0 and kf[1] < 6: continue
            sl = min(freeat, key=lambda z: freeat[z])
            reads.append((max(freeat[sl] + 1, i - LT, 1), kf, sl))
            slot[kf] = sl; freeat[sl] = i
        groups = [group_mfmas(wset[k], f, slot[(k, f)], ("x", f, st0 + k), st0 + k) for (k, f) in order]
        nm = sum(len(x) for x in groups)
        start = [sum(len(x) for x in groups[:i]) for i in range(len(order) + 1)]
        fill = [[] for _ in range(nm)]
        fill[0].append(("i", f"v_xor_b32 v{V_XA2}, {XSLOT}, v{V_XA[1]}"))
        fill[0].append(("i", f"v_add_u32 v{V_WA[0]}, s{S_DELTA}, v{V_WA[0]}"))
        fill[1].append(("i", f"v_add_u32 v{V_WA[1]}, s{S_DELTA}, v{V_WA[1]}"))
        fill[o.tbar].append(("bar_nowait",))
        if o.stamp:
            fill[o.tbar].append(("i", "s_memtime s[84:85]"))
            fill[nm - 1].append(("i", "s_memtime s[86:87]"))
        for (gi, (k, f), sl) in reads:
            txt = xread(xpar[k], f, sl)
            if k == 2: txt = txt.replace(f"v{V_XA[1]} ", f"v{V_XA2} ")
            fill[max(start[gi], o.tbar)].append(("l", txt, ("x", f, st0 + k)))
        free = [i for i in range(o.tbar + 1, nm) if not fill[i]]
        wl = [("l", wread(0, *w_, slot=0), ("w",) + w_ + (st0 + 1,)) for w_ in worder] + \
             [("l", wread(2, *w_, slot=1), ("w",) + w_ + (st0 + 2,)) for w_ in worder]
        for k, it in enumerate(wl):
            fill[free[k]].append(it)
        flat = [m for gr in groups for m in gr]
        last = {}
        for i, m in enumerate(flat): last[m[3]] = i
        units = sorted(last, key=lambda u: last[u])
        ui = 0; ops = []; ready = 0
        queue = []
        nstart = 0
        for i in range(nm):
            budget = o.budget - sum(1 for it in fill[i] if it[0] == "l") * o.ldscost
            while budget > 0:
                if not queue:
                    if nstart < len(units) and last[units[nstart]] + o.gap <= i:
                        queue = unit_ops(*units[nstart], nstart, False); nstart += 1
                    else: break
                txt, c = queue[0]
                if c > budget and budget < o.budget: break
                fill[i].append(("i", txt)); queue.pop(0); budget -= c
        items = []
        for i, m in enumerate(flat):
            items.append(m); items += fill[i]
        tail = q.run(items)
        pend = [t for t, c in queue]
        rest_units = units[nstart:]
        ubase = nstart

    g("s_barrier")
    if o.stamp:
        g(f"s_memtime s[{S_STAMP+4}:{S_STAMP+5}]")
        g(f"s_memrealtime s[{S_STAMP+14}:{S_STAMP+15}]")
        g("s_waitcnt lgkmcnt(0)")
    for w_ in worder[:8]: g(wread(0, *w_))
    for f in range(2): g(xread(0, f, f))
    for w_ in worder[8:]: g(wread(0, *w_))
    for f in range(2, L): g(xread(0, f, f))
    g(f"s_mov_b32 s{S_DELTA}, {2*WSLOT}")
    g(f"s_mov_b32 s{S_CNT}, 0")
    if o.prio: g(f"s_setprio {o.prio}")
    g("s_waitcnt lgkmcnt(0)")
    g("s_barrier")
    stage0p, n_ins0 = hz.pad(stage0)
    sys.stderr.write(f"stage0: {n_ins0} nops inserted\n")
    for s_ in stage0p: g(s_)
    g.raw(".p2align 6")
    g.label("L_loop")
    for s_ in body: g(s_)
    g("s_cbranch_scc1 L_loop")
    if o.stamp:
        g(f"s_memtime s[{S_STAMP+6}:{S_STAMP+7}]")
        g(f"s_memrealtime s[{S_STAMP+16}:{S_STAMP+17}]")
    fin = list(tail) + list(pend)
    for j, (sp, bg) in enumerate(rest_units):
        fin += [txt for txt, c in unit_ops(sp, bg, ubase + j, o.pk)]
    padded, n_ins = hz.pad(body[-24:] + fin)
    assert padded[:24] == body[-24:]
    sys.stderr.write(f"tail: {ubase} units started under MFMA, {len(pend)} pending ops, {n_ins} nops inserted\n")
    for s_ in padded[24:]: g(s_)
    if o.stamp:
        g(f"s_memtime s[{S_STAMP+8}:{S_STAMP+9}]")
        g("s_waitcnt vmcnt(0)")
        g(f"s_memtime s[{S_STAMP+10}:{S_STAMP+11}]")
        g(f"s_memrealtime s[{S_STAMP+12}:{S_STAMP+13}]")
        g("s_waitcnt lgkmcnt(0)")
        g(f"s_lshl_b32 s{S_T+1}, s2, 2")
        g(f"s_add_u32 s{S_T+1}, s{S_T+1}, s{S_T}")
        g(f"s_lshl_b32 s{S_T+1}, s{S_T+1}, 6")
        g(f"s_mov_b32 s{S_PS}, s54")
        g(f"s_mov_b32 s{S_PS+1}, s55")
        g(f"s_mov_b32 s{S_PS+2}, 0x100000")
        g(f"v_mov_b32 v{V_T}, s{S_T+1}")
        S = S_STAMP
        for i, r in enumerate([S, S+2, S+4, S+14, S+6, S+16, 84, 86, S+8, S+10, S+12]):
            g(f"v_mov_b32 v{V_WB[0]+i}, s{r}")
        g("s_mov_b64 exec, 1")
        for i in range(4):
            g(f"buffer_store_dwordx4 {vr(V_WB[0]+4*i,4)}, v{V_T}, s[{S_PS}:{S_PS+3}], 0 offen offset:{16*i}")
    g.label("L_end")
    g("s_endpgm")
    g.raw('.section .rodata,"a"')
    g.raw(".p2align 6")
    g.raw(f".amdhsa_kernel {KN}")
    g.raw("  .amdhsa_next_free_vgpr 256")
    g.raw("  .amdhsa_next_free_sgpr 96")
    g.raw("  .amdhsa_accum_offset 256")
    g.raw("  .amdhsa_group_segment_fixed_size 0")
    g.raw("  .amdhsa_kernarg_size 72")
    g.raw("  .amdhsa_user_sgpr_count 2")
    g.raw("  .amdhsa_user_sgpr_kernarg_segment_ptr 1")
    g.raw("  .amdhsa_system_sgpr_workgroup_id_x 1")
    g.raw(".end_amdhsa_kernel")
    return g.text()

if __name__ == "__main__":
    ap = argparse.ArgumentParser()
    ap.add_argument("--lead", type=int, default=6)
    ap.add_argument("--stflags", default="sc1")
    ap.add_argument("--tfl", default="")
    ap.add_argument("--stamp", action="store_true")
    ap.add_argument("--codepf", type=int, default=1)
    ap.add_argument("--tail", type=int, default=1)
    ap.add_argument("--pk", type=int, default=1)
    ap.add_argument("--touch", type=int, default=0)
    ap.add_argument("--budget", type=int, default=2)
    ap.add_argument("--ldscost", type=int, default=1)
    ap.add_argument("--fakeline", type=int, default=0)
    ap.add_argument("--fine", type=int, default=0)
    ap.add_argument("--i0", type=int, default=16)
    ap.add_argument("--i1", type=int, default=18)
    ap.add_argument("--i2", type=int, default=21)
    ap.add_argument("--tbar", type=int, default=1)
    ap.add_argument("--prio", type=int, default=0)
    ap.add_argument("--bn0", type=int, default=2)
    ap.add_argument("--gap", type=int, default=5)
    ap.add_argument("-o", default="-")
    o = ap.parse_args()
    for k in ("stflags", "tfl"):
        if getattr(o, k): setattr(o, k, " " + getattr(o, k))
    t = gen(o)
    if o.o == "-": sys.stdout.write(t)
    else: open(o.o, "w").write(t)
```

```python
import sys, argparse

HEADER = """; Kernarg layout for this problem (72 bytes, ptrs only, base s[0:1]):
"""
KN = "standalone__batchnorm__sampling_kernel"

SLOT = 40960
WREG = 10240

class G:
    def __init__(self):
        self.lines = []
    def __call__(self, s):
        self.lines.append("    " + s)
    def label(self, s):
        self.lines.append(s + ":")
    def raw(self, s):
        self.lines.append(s)
    def text(self):
        return "\n".join(self.lines) + "\n"

def vr(b, n):
    return f"v[{b}:{b+n-1}]" if n > 1 else f"v{b}"

def gen(o):
    g = G()
    S_MODE = o.mode == "S"
    nthreads = 512 if S_MODE else 256
    shape = o.shape
    L = o.lead
    NXB = 8
    V_XD, V_WD = 1, 2
    V_XA = [[3, 4], [5, 6]]
    V_WA = [[7, 8], [9, 10]]
    V_OUT = 11
    V_ZERO = 47
    V_T = 12
    V_SC, V_SH = 16, 32
    V_XB = 48
    V_WB = [80, 104]
    V_ACC = 128
    NBN = 8 if shape == 16 else 16
    S_XS, S_WS, S_OS = 8, 12, 16
    S_PS = 20
    S_WAVE, S_B0, S_N0 = 24, 25, 26
    S_M = [27, 28]
    S_DELTA, S_CNT = 29, 30
    S_XO1 = 31
    S_WO = [32, 33, 34, 35, 36, 37]
    S_XN, S_WN = 38, 39
    S_T = 40
    S_STAMP = 60

    def acc(sp, bg, d):
        if shape == 16:
            return V_ACC + ((sp * 2 + bg) * 2 + d) * 4
        return V_ACC + sp * 16
    def wfrag(p, t, d):
        return V_WB[p] + (t * 2 + d) * 4

    g.raw(HEADER + f"; @launch grid=(256,1,1) block=({nthreads},1,1) lds=163840")
    g.raw('.amdgcn_target "amdgcn-amd-amdhsa--gfx950"')
    g.raw(".text")
    g.raw(f".globl {KN}")
    g.raw(".p2align 8")
    g.raw(f".type {KN},@function")
    g.label(KN)
    g("s_cmp_ge_u32 s2, 256")
    g("s_cbranch_scc1 L_end")
    if o.stamp:
        g(f"s_memtime s[{S_STAMP}:{S_STAMP+1}]")
        g(f"s_memrealtime s[{S_STAMP+2}:{S_STAMP+3}]")
    g("s_load_dwordx4 s[4:7], s[0:1], 0")
    g("s_load_dwordx8 s[44:51], s[0:1], 16")
    g("s_load_dwordx2 s[52:53], s[0:1], 48")
    if o.stamp:
        g("s_load_dwordx2 s[54:55], s[0:1], 64")
    g("s_and_b32 s3, s2, 7")
    g(f"s_lshr_b32 s{S_T}, s2, 3")
    g(f"s_lshr_b32 s{S_B0}, s3, 1")
    g(f"s_lshl_b32 s{S_B0}, s{S_B0}, 3")
    g(f"s_lshr_b32 s{S_T+1}, s{S_T}, 2")
    g(f"s_add_u32 s{S_B0}, s{S_B0}, s{S_T+1}")
    g(f"s_lshl_b32 s{S_B0}, s{S_B0}, 19")
    g(f"s_and_b32 s{S_N0}, s3, 1")
    g(f"s_lshl_b32 s{S_N0}, s{S_N0}, 2")
    g(f"s_and_b32 s{S_T+1}, s{S_T}, 3")
    g(f"s_add_u32 s{S_N0}, s{S_N0}, s{S_T+1}")
    g(f"s_lshl_b32 s{S_N0}, s{S_N0}, 8")
    g(f"v_lshrrev_b32 v{V_T}, 6, v0")
    g("v_and_b32 v0, 63, v0")
    g(f"v_readfirstlane_b32 s{S_WAVE}, v{V_T}")
    g(f"v_lshrrev_b32 v{V_T}, 4, v0")
    g(f"v_sub_u32 v{V_T+1}, 0, v{V_T}")
    g(f"v_xor_b32 v{V_T+1}, v{V_T+1}, v0")
    g(f"v_and_b32 v{V_T+1}, 3, v{V_T+1}")
    g(f"v_lshlrev_b32 v{V_T+1}, 4, v{V_T+1}")
    g(f"v_lshrrev_b32 v{V_T+2}, 2, v0")
    g(f"v_lshl_add_u32 v{V_XD}, v{V_T+2}, 14, v{V_T+1}")
    g(f"s_and_b32 s{S_T}, s{S_WAVE}, 3")
    g(f"s_lshl_b32 s{S_T+1}, s{S_T}, 12")
    g(f"v_add_u32 v{V_XD}, s{S_T+1}, v{V_XD}")
    g(f"s_and_b32 s{S_T+2}, s{S_T}, 1")
    g(f"s_lshl_b32 s{S_T+2}, s{S_T+2}, 1")
    g(f"v_lshl_add_u32 v{V_T+1}, v{V_T}, 2, s{S_T+2}")
    g(f"v_xor_b32 v{V_T+1}, v{V_T+1}, v0")
    g(f"v_and_b32 v{V_T+1}, 15, v{V_T+1}")
    g(f"v_lshlrev_b32 v{V_T+1}, 4, v{V_T+1}")
    g(f"v_lshl_add_u32 v{V_WD}, v{V_T}, 11, v{V_T+1}")
    g(f"s_lshl_b32 s{S_T+1}, s{S_T}, 14")
    g(f"v_add_u32 v{V_WD}, s{S_T+1}, v{V_WD}")
    g(f"v_mov_b32 v{V_ZERO}, 0x7ff00000")
    g(f"s_mov_b32 s{S_XO1}, 261120")
    for j in range(6):
        t, qq = j >> 1, j & 1
        io = (j % 4) * 1024
        g(f"s_mov_b32 s{S_WO[j]}, {t * 2097152 + qq * 8192 - io}")
    g(f"s_mul_i32 s{S_M[1]}, s{S_T}, {WREG}")
    g(f"s_mov_b32 s{S_XS+3}, 0x20000")
    g(f"s_mov_b32 s{S_WS+3}, 0x20000")
    g(f"s_mov_b32 s{S_OS+3}, 0x20000")
    g(f"s_mov_b32 s{S_PS+3}, 0x20000")
    g(f"s_mov_b32 s{S_PS+2}, 2048")
    g(f"s_sub_u32 s{S_XN}, 16777216, s{S_B0}")
    g(f"s_sub_u32 s{S_WN}, 6291456, s{S_N0}")
    g("s_waitcnt lgkmcnt(0)")
    g(f"s_add_u32 s{S_XS}, s4, s{S_B0}")
    g(f"s_addc_u32 s{S_XS+1}, s5, 0")
    g(f"s_mov_b32 s{S_XS+2}, s{S_XN}")
    g(f"s_add_u32 s{S_WS}, s6, s{S_N0}")
    g(f"s_addc_u32 s{S_WS+1}, s7, 0")
    g(f"s_mov_b32 s{S_WS+2}, s{S_WN}")

    def dma_ops(m0reg):
        ops = []
        xs = f"s[{S_XS}:{S_XS+3}]"; ws = f"s[{S_WS}:{S_WS+3}]"
        def ld(v, srd, so, off):
            offs = f" offset:{off}" if off else ""
            return f"buffer_load_dwordx4 v{v}, {srd}, {so} offen{offs} lds"
        wl = [ld(V_WD, ws, f"s{S_WO[j]}", (j % 4) * 1024) for j in range(6)]
        xl = [ld(V_XD, xs, "0" if (i & 1) == 0 else f"s{S_XO1}", i * 1024) for i in range(4)]
        if o.only == "x": wl = [w_.replace(f"v{V_WD},", f"v{V_ZERO},").replace("offen", "offen") for w_ in wl]
        if o.only == "w": xl = [x_.replace(f"v{V_XD},", f"v{V_ZERO},") for x_ in xl]
        ops.append((f"s_add_u32 m0, s{m0reg}, 4096", wl[0]))
        ops += [(None, wl[1]), (None, wl[2]), (None, wl[3])]
        ops.append((f"s_add_u32 m0, s{m0reg}, 8192", wl[4]))
        ops.append((None, wl[5]))
        ops.append((f"s_mov_b32 m0, s{m0reg}", xl[0]))
        ops += [(None, xl[1]), (None, xl[2]), (None, xl[3])]
        return ops
    def srd_adv():
        return [f"s_add_u32 s{S_XS}, s{S_XS}, 64", f"s_addc_u32 s{S_XS+1}, s{S_XS+1}, 0",
                f"s_add_u32 s{S_WS}, s{S_WS}, 65536", f"s_addc_u32 s{S_WS+1}, s{S_WS+1}, 0"]
    def emit_dma_burst(m0reg):
        for m, d in dma_ops(m0reg):
            if m:
                g(m); g("s_nop 0")
            g(d)
        for s in srd_adv(): g(s)

    NPRE = 4 if S_MODE else 3
    if S_MODE:
        g(f"s_cmp_lt_u32 s{S_WAVE}, 4")
        g("s_cbranch_scc1 L_consumer")
        for st in range(4):
            emit_dma_burst(S_M[1])
            g(f"s_add_u32 s{S_M[1]}, s{S_M[1]}, {SLOT}")
        g(f"s_sub_u32 s{S_M[1]}, s{S_M[1]}, {4*SLOT}")
        g(f"s_add_u32 s{S_M[0]}, s{S_M[1]}, {4*SLOT}")
        g("s_waitcnt vmcnt(30)")
        g("s_barrier")
        g(f"s_mov_b32 s{S_CNT}, 4")
        g.label("L_ld_loop")
        g("s_waitcnt vmcnt(20)")
        g("s_barrier")
        g(f"s_cmp_lt_u32 s{S_CNT}, 32")
        g(f"s_cselect_b32 s{S_XS+2}, s{S_XN}, 0")
        g(f"s_cselect_b32 s{S_WS+2}, s{S_WN}, 0")
        if "x" in o.zrec: g(f"s_mov_b32 s{S_XS+2}, 0")
        if "w" in o.zrec: g(f"s_mov_b32 s{S_WS+2}, 0")
        if "s" in o.zrec:
            g(f"s_sub_u32 s{S_XS}, s{S_XS}, 64"); g(f"s_subb_u32 s{S_XS+1}, s{S_XS+1}, 0")
            g(f"s_sub_u32 s{S_WS}, s{S_WS}, 65536"); g(f"s_subb_u32 s{S_WS+1}, s{S_WS+1}, 0")
        if not o.nodma: emit_dma_burst(S_M[1])
        for k in range(o.lvalu):
            g(f"v_fma_f32 v{20 + k % 16}, v{40 + k % 8}, v{50 + k % 8}, v{60 + k % 8}")
        for k in range(o.ltrans):
            g(f"v_exp_f32 v{20 + k % 16}, v{40 + k % 8}")
        g(f"s_add_u32 s{S_M[1]}, s{S_M[1]}, {SLOT}")
        g(f"s_cmp_eq_u32 s{S_M[1]}, s{S_M[0]}")
        g(f"s_cselect_b32 s{S_T}, {4*SLOT}, 0")
        g(f"s_sub_u32 s{S_M[1]}, s{S_M[1]}, s{S_T}")
        g(f"s_add_u32 s{S_CNT}, s{S_CNT}, 1")
        g(f"s_cmp_lt_u32 s{S_CNT}, 36")
        g("s_cbranch_scc1 L_ld_loop")
        g("s_endpgm")
        g.label("L_consumer")

    if shape == 16:
        g(f"v_lshrrev_b32 v{V_T}, 4, v0")
        g(f"v_lshlrev_b32 v{V_T}, 3, v{V_T}")
    else:
        g(f"v_lshrrev_b32 v{V_T}, 5, v0")
        g(f"v_lshlrev_b32 v{V_T}, 4, v{V_T}")
    g(f"s_lshl_b32 s{S_T+1}, s{S_T}, 6")
    g(f"s_add_u32 s{S_T+1}, s{S_T+1}, s{S_N0}")
    g(f"v_add_u32 v{V_T}, s{S_T+1}, v{V_T}")
    V_RAW = V_XB
    nraw = NBN // 2
    npl = 0
    for pi in range(4):
        g(f"s_mov_b32 s{S_PS}, s{44+2*pi}")
        g(f"s_mov_b32 s{S_PS+1}, s{45+2*pi}")
        for d in range(2):
            if shape == 16:
                g(f"buffer_load_dwordx2 {vr(V_RAW+pi*nraw+2*d,2)}, v{V_T}, s[{S_PS}:{S_PS+3}], 0 offen offset:{32*d}")
            else:
                g(f"buffer_load_dwordx4 {vr(V_RAW+pi*nraw+4*d,4)}, v{V_T}, s[{S_PS}:{S_PS+3}], 0 offen offset:{32*d}")
            npl += 1
    if not S_MODE:
        for st in range(3):
            emit_dma_burst(S_M[1])
            g(f"s_add_u32 s{S_M[1]}, s{S_M[1]}, {SLOT}")
        g(f"s_mov_b32 s{S_M[0]}, s{S_M[1]}")
        g(f"s_sub_u32 s{S_M[1]}, s{S_M[1]}, {3*SLOT}")
    if shape == 16:
        g(f"v_and_b32 v{V_T}, 15, v0")
        g(f"v_lshrrev_b32 v{V_T+1}, 2, v{V_T}")
        g(f"v_sub_u32 v{V_T+1}, 0, v{V_T+1}")
        g(f"v_lshrrev_b32 v{V_T+2}, 4, v0")
        g(f"v_xor_b32 v{V_T+1}, v{V_T+1}, v{V_T+2}")
        g(f"v_and_b32 v{V_T+1}, 3, v{V_T+1}")
        g(f"v_lshlrev_b32 v{V_T+1}, 4, v{V_T+1}")
        g(f"v_lshl_add_u32 v{V_XA[0][0]}, v{V_T}, 6, v{V_T+1}")
        g(f"v_add_u32 v{V_XA[1][0]}, {SLOT}, v{V_XA[0][0]}")
        g(f"v_bfe_u32 v{V_T}, v0, 2, 2")
        g(f"v_xor_b32 v{V_T+1}, s{S_T}, v{V_T}")
        g(f"v_lshlrev_b32 v{V_T+1}, 6, v{V_T+1}")
        g(f"v_lshl_add_u32 v{V_T+1}, v{V_T}, 8, v{V_T+1}")
        g(f"v_mul_u32_u24 v{V_T+3}, {WREG}, v{V_T+2}")
        g(f"v_add_u32 v{V_T+1}, v{V_T+1}, v{V_T+3}")
        g(f"v_and_b32 v{V_T+2}, 1, v{V_T+2}")
        g(f"v_lshl_add_u32 v{V_T+1}, v{V_T+2}, 5, v{V_T+1}")
        g(f"v_and_b32 v{V_T+2}, 3, v0")
        g(f"v_lshl_add_u32 v{V_T+1}, v{V_T+2}, 3, v{V_T+1}")
        g(f"v_add_u32 v{V_WA[0][0]}, 4096, v{V_T+1}")
        g(f"v_xor_b32 v{V_WA[0][1]}, 32, v{V_WA[0][0]}")
        g(f"v_add_u32 v{V_WA[1][0]}, {SLOT}, v{V_WA[0][0]}")
        g(f"v_add_u32 v{V_WA[1][1]}, {SLOT}, v{V_WA[0][1]}")
        addr_regs = [[V_XA[p][0], V_WA[p][0], V_WA[p][1]] for p in range(2)]
    else:
        g(f"v_and_b32 v{V_T}, 15, v0")
        g(f"v_lshrrev_b32 v{V_T+1}, 2, v{V_T}")
        g(f"v_sub_u32 v{V_T+1}, 0, v{V_T+1}")
        g(f"v_lshrrev_b32 v{V_T+2}, 5, v0")
        g(f"v_xor_b32 v{V_T+1}, v{V_T+1}, v{V_T+2}")
        g(f"v_and_b32 v{V_T+1}, 3, v{V_T+1}")
        g(f"v_lshlrev_b32 v{V_T+1}, 4, v{V_T+1}")
        g(f"v_lshl_add_u32 v{V_T+1}, v{V_T}, 6, v{V_T+1}")
        g(f"v_bfe_u32 v{V_T+3}, v0, 4, 1")
        g(f"v_lshl_add_u32 v{V_XA[0][0]}, v{V_T+3}, 10, v{V_T+1}")
        g(f"v_xor_b32 v{V_XA[0][1]}, 32, v{V_XA[0][0]}")
        g(f"v_add_u32 v{V_XA[1][0]}, {SLOT}, v{V_XA[0][0]}")
        g(f"v_add_u32 v{V_XA[1][1]}, {SLOT}, v{V_XA[0][1]}")
        g(f"v_bfe_u32 v{V_T}, v0, 2, 2")
        g(f"v_xor_b32 v{V_T+1}, s{S_T}, v{V_T}")
        g(f"v_lshlrev_b32 v{V_T+1}, 6, v{V_T+1}")
        g(f"v_lshl_add_u32 v{V_T+1}, v{V_T}, 8, v{V_T+1}")
        g(f"v_mul_u32_u24 v{V_T}, {WREG}, v{V_T+2}")
        g(f"v_add_u32 v{V_T+1}, v{V_T+1}, v{V_T}")
        g(f"v_xor_b32 v{V_T}, v{V_T+2}, v{V_T+3}")
        g(f"v_lshl_add_u32 v{V_T+1}, v{V_T}, 5, v{V_T+1}")
        g(f"v_and_b32 v{V_T}, 1, v0")
        g(f"v_lshl_add_u32 v{V_T+1}, v{V_T}, 4, v{V_T+1}")
        g(f"v_bfe_u32 v{V_T}, v0, 1, 1")
        g(f"v_lshl_add_u32 v{V_T+1}, v{V_T}, 3, v{V_T+1}")
        g(f"v_add_u32 v{V_WA[0][0]}, 4096, v{V_T+1}")
        g(f"v_add_u32 v{V_WA[1][0]}, {SLOT}, v{V_WA[0][0]}")
        addr_regs = [[V_XA[p][0], V_XA[p][1], V_WA[p][0]] for p in range(2)]
    g(f"s_add_u32 s{S_T+1}, s{S_B0}, s{S_N0}")
    g(f"s_add_u32 s{S_OS}, s52, s{S_T+1}")
    g(f"s_addc_u32 s{S_OS+1}, s53, 0")
    g(f"s_sub_u32 s{S_OS+2}, 16777216, s{S_T+1}")
    g(f"v_and_b32 v{V_T}, 15, v0")
    g(f"v_lshlrev_b32 v{V_T}, 14, v{V_T}")
    g(f"v_bfe_u32 v{V_T+1}, v0, 4, 1")
    g(f"v_lshl_add_u32 v{V_T}, v{V_T+1}, 5, v{V_T}")
    g(f"v_lshrrev_b32 v{V_T+1}, 5, v0")
    g(f"v_lshl_add_u32 v{V_T}, v{V_T+1}, 4, v{V_T}")
    g(f"s_lshl_b32 s{S_T+1}, s{S_T}, 6")
    g(f"v_add_u32 v{V_OUT}, s{S_T+1}, v{V_T}")
    for i in range(128):
        g(f"v_mov_b32 v{V_ACC+i}, 0")
    g(f"s_waitcnt vmcnt({0 if S_MODE else 30})")
    M_, V_, G_, B_ = (V_RAW + i * nraw for i in range(4))
    TA, TB = V_WB[1], V_WB[1] + 1
    g(f"s_mov_b32 s{S_T+1}, 0x3727c5ac")
    def unpack(dst, src, hi):
        if hi: g(f"v_and_b32 v{dst}, 0xffff0000, v{src}")
        else:  g(f"v_lshlrev_b32 v{dst}, 16, v{src}")
    for k in range(nraw):
        lo, hi = V_SC + 2 * k, V_SC + 2 * k + 1
        unpack(lo, V_ + k, 0); unpack(hi, V_ + k, 1)
        g(f"v_add_f32 v{lo}, s{S_T+1}, v{lo}")
        g(f"v_add_f32 v{hi}, s{S_T+1}, v{hi}")
        g(f"v_cvt_pk_bf16_f32 v{TA}, v{lo}, v{hi}")
        unpack(lo, TA, 0); unpack(hi, TA, 1)
        g(f"v_sqrt_f32 v{lo}, v{lo}")
        g(f"v_sqrt_f32 v{hi}, v{hi}")
        g("s_nop 0")
        g(f"v_cvt_pk_bf16_f32 v{TA}, v{lo}, v{hi}")
        unpack(lo, TA, 0); unpack(hi, TA, 1)
        g(f"v_rcp_f32 v{lo}, v{lo}")
        g(f"v_rcp_f32 v{hi}, v{hi}")
        g("s_nop 0")
        g(f"v_cvt_pk_bf16_f32 v{TA}, v{lo}, v{hi}")
        unpack(lo, TA, 0); unpack(hi, TA, 1)
        unpack(TA, G_ + k, 0); unpack(TB, G_ + k, 1)
        g(f"v_mul_f32 v{lo}, v{lo}, v{TA}")
        g(f"v_mul_f32 v{hi}, v{hi}, v{TB}")
        g(f"v_cvt_pk_bf16_f32 v{TA}, v{lo}, v{hi}")
        unpack(lo, TA, 0); unpack(hi, TA, 1)
        slo, shi = V_SH + 2 * k, V_SH + 2 * k + 1
        unpack(slo, B_ + k, 0); unpack(shi, B_ + k, 1)
        unpack(TA, M_ + k, 0); unpack(TB, M_ + k, 1)
        g(f"v_fma_f32 v{slo}, -v{TA}, v{lo}, v{slo}")
        g(f"v_fma_f32 v{shi}, -v{TB}, v{hi}, v{shi}")

    def xread(p, f):
        s, q = f >> 1, f & 1
        buf = V_XB + (f % NXB) * 4
        if shape == 16:
            off = (s >> 1) * WREG + (2 * (s & 1) + q) * 1024
            return f"ds_read_b128 {vr(buf,4)}, v{V_XA[p][0]} offset:{off}"
        off = (s >> 1) * WREG + 2 * (s & 1) * 1024
        return f"ds_read_b128 {vr(buf,4)}, v{V_XA[p][q]} offset:{off}"
    def wread(p, t, d, h):
        dst = wfrag(p, t, d) + 2 * h
        if shape == 16:
            return f"ds_read_b64_tr_b16 {vr(dst,2)}, v{V_WA[p][d]} offset:{t*2048 + h*1024}"
        return f"ds_read_b64_tr_b16 {vr(dst,2)}, v{V_WA[p][0]} offset:{d*2*WREG + t*2048 + h*1024}"
    def group_mfmas(p, f):
        s, q = f >> 1, f & 1
        buf = V_XB + (f % NXB) * 4
        out = []
        for t in range(3):
            sp = s - t + 1
            if not 0 <= sp <= 7: continue
            if shape == 16:
                for d in range(2):
                    a = acc(sp, q, d)
                    out.append((f"v_mfma_f32_16x16x32_bf16 {vr(a,4)}, {vr(wfrag(p,t,d),4)}, {vr(buf,4)}, {vr(a,4)}",
                                [("x", f), ("w", t, d, 0), ("w", t, d, 1)]))
            else:
                a = acc(sp, 0, 0)
                out.append((f"v_mfma_f32_32x32x16_bf16 {vr(a,16)}, {vr(wfrag(p,t,q),4)}, {vr(buf,4)}, {vr(a,16)}",
                            [("x", f), ("w", t, q, 0), ("w", t, q, 1)]))
        return out
    if shape == 16:
        worder = [(t, d, h) for t in range(3) for d in range(2) for h in range(2)]
    else:
        worder = [(t, d, h) for d in range(2) for t in range(2) for h in range(2)] + \
                 [(2, d, h) for d in range(2) for h in range(2)]

    def stage_stream(p):
        items = []
        groups = [group_mfmas(p, f) for f in range(16)]
        nm = sum(len(x) for x in groups)
        fill = [[] for _ in range(nm)]
        start = [sum(len(x) for x in groups[:f]) for f in range(17)]
        fb = 16 - L
        for f in range(16):
            if f + L < 16:
                fill[start[f]].append(("l", xread(p, f + L), ("x", f + L, 0)))
        ib = start[fb + 1] - 1
        fill[ib].append(("bar",))
        fill[ib].append(("l", xread(1 - p, 0), ("x", 0, 1)))
        taken = set()
        for f in range(fb + 1, 16):
            fill[start[f]].append(("l", xread(1 - p, f + L - 16), ("x", f + L - 16, 1)))
            taken.add(start[f])
        free = [i for i in range(ib + 1, nm) if i not in taken]
        per = o.wper
        k = 0
        for w_ in worder:
            i = free[min(k // per, len(free) - 1)]
            fill[i].append(("l", wread(1 - p, *w_), ("w",) + w_ + (1,)))
            k += 1
        irot = start[15 - L] + 1
        for j, r in enumerate(addr_regs[p]):
            fill[irot + j].append(("i", f"v_add_u32 v{r}, s{S_DELTA}, v{r}"))
        if not S_MODE:
            ops = dma_ops(S_M[p])
            i0 = o.dma0
            step = o.dmastep
            fill[0].append(("i", f"s_cmp_lt_u32 s{S_CNT}, {29 - p}"))
            fill[0].append(("i", f"s_cselect_b32 s{S_XS+2}, s{S_XN}, 0"))
            fill[1].append(("i", f"s_cselect_b32 s{S_WS+2}, s{S_WN}, 0"))
            for j, (m, d) in enumerate(ops):
                i = i0 + j * step
                assert i < ib, (i, ib)
                if m: fill[i - 1].append(("i", m))
                fill[i].append(("i", d))
            il = i0 + (len(ops) - 1) * step
            for j, s_ in enumerate(srd_adv()):
                fill[il + 1 + j // 2].append(("i", s_))
            fill[il + 3].append(("i", f"s_{'sub' if p == 0 else 'add'}_u32 s{S_M[p]}, s{S_M[p]}, s{S_DELTA}"))
        if p == 1:
            fill[nm - 4].append(("i", f"s_sub_u32 s{S_DELTA}, 0, s{S_DELTA}"))
            fill[nm - 3].append(("i", f"s_add_u32 s{S_CNT}, s{S_CNT}, 2"))
            fill[nm - 2].append(("i", f"s_cmp_lt_u32 s{S_CNT}, 32"))
        i = 0
        for f in range(16):
            for (txt, needs) in groups[f]:
                items.append(("m", txt, needs))
                items += fill[i]
                i += 1
        return items

    streams = [stage_stream(0), stage_stream(1)]
    def place_waits():
        seq = []
        done = -1
        out = None
        for it in range(3):
            cur = []
            for p in range(2):
                st = 2 * it + p
                for item in streams[p]:
                    if item[0] == "m":
                        need = -1
                        for n_ in item[2]:
                            key = n_ + (st,)
                            idx = [i for i, t_ in enumerate(seq) if t_ == key]
                            if idx: need = max(need, idx[-1])
                            else: assert st == 0, key
                        if need > done:
                            cnt = len(seq) - 1 - need
                            cnt = min(cnt, 15)
                            cur.append(f"s_waitcnt lgkmcnt({cnt})")
                            done = len(seq) - 1 - cnt
                        cur.append(item[1])
                    elif item[0] == "l":
                        tag = item[2]
                        seq.append(tag[:-1] + (st + tag[-1],))
                        cur.append(item[1])
                    elif item[0] == "bar":
                        cur.append("s_waitcnt lgkmcnt(0)" if S_MODE else "s_waitcnt vmcnt(20) lgkmcnt(0)")
                        cur.append("s_barrier")
                        done = len(seq) - 1
                    else:
                        cur.append(item[1])
            if it == 2: assert cur == out
            out = cur
        return out
    body = place_waits()
    if o.nolds:
        body = [b for b in body if not (b.startswith("ds_read") or b.startswith("s_waitcnt lgkmcnt"))]
    if o.nodma:
        body = [b for b in body if not b.startswith("buffer_load")]
    if o.nolds and o.order != "x":
        nb = []
        half = []
        ms = [b for b in body if b.startswith("v_mfma")]
        n = len(ms) // 2
        res = []
        for p in range(2):
            m = ms[p * n:(p + 1) * n]
            key = lambda t: t.split(",")[0]
            if o.order == "acc":
                m = sorted(m, key=lambda t: int(t.split("[")[1].split(":")[0]))
            elif o.order == "w":
                m = sorted(m, key=lambda t: int(t.split("[")[2].split(":")[0]))
            elif o.order == "swap":
                def sw(t):
                    a = t.split(", ")
                    return ", ".join([a[0], a[2], a[1], a[3]])
                m = [sw(t) for t in m]
            res += m
        if o.order == "acc2":
            res = sorted(ms, key=lambda t: int(t.split("[")[1].split(":")[0]))
        if o.order == "pair":
            res = []
            for p in range(2):
                m = sorted(ms[p * n:(p + 1) * n], key=lambda t: int(t.split("[")[1].split(":")[0]))
                by = {}
                for t in m: by.setdefault(int(t.split("[")[1].split(":")[0]), []).append(t)
                ks = sorted(by)
                for a_, b_ in zip(ks[0::2], ks[1::2]):
                    for u, v_ in zip(by[a_], by[b_]): res += [u, v_]
        it = iter(res)
        body = [next(it) if b.startswith("v_mfma") else b for b in body]
    if o.keep < 0:
        body = [b for b in body if not b.startswith("v_mfma")]
    if o.keep > 0:
        nb = []; i = 0
        for b in body:
            if b.startswith("v_mfma"):
                if i % 11 < o.keep: nb.append(b)
                elif o.fillnop >= 0: nb.append(f"s_nop {o.fillnop}")
                i += 1
            else: nb.append(b)
        body = nb
    if o.cblock:
        n_, op_ = o.cblock.split(":")
        nb = []
        for b in body:
            nb.append(b)
            if b == "s_barrier":
                for k in range(int(n_)):
                    a = 16 + (k % 8) * 2; x1 = V_XB + (k * 2) % 32; x2 = V_WB[0] + (k * 2 + 6) % 46
                    if op_ == "fma": nb.append(f"v_fma_f32 v{a}, v{x1}, v{x2}, v{x2+1}")
                    elif op_ == "mul": nb.append(f"v_mul_f32 v{a}, v{x1}, v{x2}")
                    elif op_ == "pk": nb.append(f"v_pk_fma_f32 v[{a}:{a+1}], v[{x1}:{x1+1}], v[{x2}:{x2+1}], v[{x1}:{x1+1}]")
                    elif op_ == "exp": nb.append(f"v_exp_f32 v{a}, v{x1}")
        body = nb
    if o.valu:
        nb = []; i = 0; k = 0
        nm = sum(b.startswith("v_mfma") for b in body)
        for b in body:
            nb.append(b)
            if b.startswith("v_mfma"):
                i += 1
                while k * nm < i * 2 * o.valu:
                    a = 16 + (k % 8) * 2; x1 = V_XB + (k * 2) % 32; x2 = V_WB[0] + (k * 2 + 6) % 48
                    if o.valuop == "add": nb.append(f"v_add_f32 v{a}, v{x1}, v{x2}")
                    elif o.valuop == "pk": nb.append(f"v_pk_add_f32 v[{a}:{a+1}], v[{x1}:{x1+1}], v[{x2}:{x2+1}]")
                    elif o.valuop == "cvt": nb.append(f"v_cvt_pk_bf16_f32 v{a}, v{x1}, v{x2}")
                    elif o.valuop == "and": nb.append(f"v_and_b32 v{a}, 0xffff0000, v{x1}")
                    elif o.valuop == "dot": nb.append(f"v_dot2_f32_bf16 v{a}, v{x1}, v{x2}, v{x2+1}")
                    k += 1
        body = nb

    if not S_MODE:
        g("s_waitcnt vmcnt(20)")
    g("s_barrier")
    if o.stamp:
        g(f"s_memtime s[{S_STAMP+4}:{S_STAMP+5}]")
        g(f"s_memrealtime s[{S_STAMP+14}:{S_STAMP+15}]")
        g("s_waitcnt lgkmcnt(0)")
    for w_ in worder: g(wread(0, *w_))
    for f in range(L): g(xread(0, f))
    if o.nolds:
        g("s_waitcnt lgkmcnt(0)")
        for w_ in worder: g(wread(1, *w_))
        g("s_waitcnt lgkmcnt(0)")
        for f in range(L, 8): g(xread(0, f))
    g(f"s_mov_b32 s{S_DELTA}, {2*SLOT}")
    g(f"s_mov_b32 s{S_CNT}, 0")
    g("s_waitcnt lgkmcnt(0)")
    g.raw(".p2align 6")
    g.label("L_loop")
    for s_ in body: g(s_)
    g("s_cbranch_scc1 L_loop")
    if o.stamp:
        g(f"s_memtime s[{S_STAMP+6}:{S_STAMP+7}]")
        g(f"s_memrealtime s[{S_STAMP+16}:{S_STAMP+17}]")
    g("s_nop 15")
    NL2E = "0xbfb8aa3b"
    g(f"s_mov_b32 s{S_T+2}, {NL2E}")
    P0 = V_XB
    def act(a, k, t):
        return
    units = []
    if shape == 16:
        for sp in range(8):
            for bg in range(2):
                regs = [(acc(sp, bg, d) + j, d * 4 + j) for d in range(2) for j in range(4)]
                units.append((regs, (bg * 128 + sp) * 2048))
    else:
        for sp in range(8):
            regs = [(acc(sp, 0, 0) + i, i) for i in range(16)]
            units.append((regs, sp * 2048))
    ui = 0
    for regs, soff in units:
        n = len(regs)
        E = V_WB[0] + (ui % 2) * 16
        P = V_XB + (ui % 4) * 8
        for (a, k) in regs:
            g(f"v_fma_f32 v{a}, v{a}, v{V_SC+k}, v{V_SH+k}")
        for i, (a, k) in enumerate(regs):
            g(f"v_mul_f32 v{E+i}, s{S_T+2}, v{a}")
        for i in range(n):
            g(f"v_exp_f32 v{E+i}, v{E+i}")
        for i in range(n):
            g(f"v_add_f32 v{E+i}, 1.0, v{E+i}")
        for i in range(n):
            g(f"v_rcp_f32 v{E+i}, v{E+i}")
        for i, (a, k) in enumerate(regs):
            g(f"v_mul_f32 v{a}, v{a}, v{E+i}")
        if shape == 16:
            for i in range(4):
                g(f"v_cvt_pk_bf16_f32 v{P+i}, v{regs[2*i][0]}, v{regs[2*i+1][0]}")
            g(f"s_mov_b32 s{S_T+3}, {soff}")
            g("s_nop 0")
            g(f"v_permlane16_swap_b32 v{P}, v{P+2}")
            g(f"v_permlane16_swap_b32 v{P+1}, v{P+3}")
            g(f"buffer_store_dwordx4 {vr(P,4)}, v{V_OUT}, s[{S_OS}:{S_OS+3}], s{S_T+3} offen{o.stflags}")
        else:
            for i in range(8):
                g(f"v_cvt_pk_bf16_f32 v{P+i}, v{regs[2*i][0]}, v{regs[2*i+1][0]}")
            g(f"s_mov_b32 s{S_T+3}, {soff}")
            g(f"s_mov_b32 s{S_T+4}, {soff + 128*2048}")
            for i in range(4):
                g(f"v_permlane16_swap_b32 v{P+i}, v{P+4+i}")
            g(f"buffer_store_dwordx4 {vr(P,4)}, v{V_OUT}, s[{S_OS}:{S_OS+3}], s{S_T+3} offen{o.stflags}")
            g(f"buffer_store_dwordx4 {vr(P+4,4)}, v{V_OUT}, s[{S_OS}:{S_OS+3}], s{S_T+4} offen{o.stflags}")
        ui += 1
    if o.stamp:
        g(f"s_memtime s[{S_STAMP+8}:{S_STAMP+9}]")
        g("s_waitcnt vmcnt(0)")
        g(f"s_memtime s[{S_STAMP+10}:{S_STAMP+11}]")
        g(f"s_memrealtime s[{S_STAMP+12}:{S_STAMP+13}]")
        g("s_waitcnt lgkmcnt(0)")
        g(f"s_lshl_b32 s{S_T+1}, s2, 2")
        g(f"s_add_u32 s{S_T+1}, s{S_T+1}, s{S_T}")
        g(f"s_lshl_b32 s{S_T+1}, s{S_T+1}, 6")
        g(f"s_mov_b32 s{S_PS}, s54")
        g(f"s_mov_b32 s{S_PS+1}, s55")
        g(f"s_mov_b32 s{S_PS+2}, 0x100000")
        g(f"v_mov_b32 v{V_T}, s{S_T+1}")
        for i in range(14):
            g(f"v_mov_b32 v{V_WB[0]+i}, s{S_STAMP+i}")
        g(f"v_mov_b32 v{V_WB[0]+14}, s{S_STAMP+14}")
        g(f"v_mov_b32 v{V_WB[0]+15}, s{S_STAMP+16}")
        g("s_mov_b64 exec, 1")
        for i in range(4):
            g(f"buffer_store_dwordx4 {vr(V_WB[0]+4*i,4)}, v{V_T}, s[{S_PS}:{S_PS+3}], 0 offen offset:{16*i}")
    g.label("L_end")
    g("s_endpgm")
    g.raw('.section .rodata,"a"')
    g.raw(".p2align 6")
    g.raw(f".amdhsa_kernel {KN}")
    g.raw("  .amdhsa_next_free_vgpr 256")
    g.raw("  .amdhsa_next_free_sgpr 96")
    g.raw("  .amdhsa_accum_offset 256")
    g.raw("  .amdhsa_group_segment_fixed_size 0")
    g.raw("  .amdhsa_kernarg_size 72")
    g.raw("  .amdhsa_user_sgpr_count 2")
    g.raw("  .amdhsa_user_sgpr_kernarg_segment_ptr 1")
    g.raw("  .amdhsa_system_sgpr_workgroup_id_x 1")
    g.raw(".end_amdhsa_kernel")
    return g.text()

if __name__ == "__main__":
    ap = argparse.ArgumentParser()
    ap.add_argument("--mode", default="U")
    ap.add_argument("--shape", type=int, default=16)
    ap.add_argument("--lead", type=int, default=6)
    ap.add_argument("--wper", type=int, default=1)
    ap.add_argument("--dma0", type=int, default=3)
    ap.add_argument("--dmastep", type=int, default=5)
    ap.add_argument("--stflags", default="")
    ap.add_argument("--stamp", action="store_true")
    ap.add_argument("--nolds", action="store_true")
    ap.add_argument("--nodma", action="store_true")
    ap.add_argument("--order", default="x")
    ap.add_argument("--valu", type=int, default=0)
    ap.add_argument("--valuop", default="add")
    ap.add_argument("--keep", type=int, default=0)
    ap.add_argument("--only", default="")
    ap.add_argument("--zrec", default="")
    ap.add_argument("--cblock", default="")
    ap.add_argument("--lvalu", type=int, default=0)
    ap.add_argument("--ltrans", type=int, default=0)
    ap.add_argument("--fillnop", type=int, default=-1)
    ap.add_argument("--rot", type=int, default=0)
    ap.add_argument("-o", default="-")
    o = ap.parse_args()
    if o.stflags: o.stflags = " " + o.stflags
    t = gen(o)
    if o.o == "-": sys.stdout.write(t)
    else: open(o.o, "w").write(t)
```

```python
import sys, argparse
from gen import HEADER, KN, G, vr
import hz

XSLOT = 32768
WBASE = 65536
WSLOT = 24576
WREG = 6144

def gen(o):
    g = G()
    L = o.lead
    NXB = 8
    V_XD, V_WD, V_TX = 1, 2, 3
    V_XA = [6, 7]
    V_WA = [8, 9]
    V_XA2 = 1
    V_OUT = 11
    V_T = 12
    V_SC, V_SH = 16, 24
    V_E = [32, 32]
    V_W2 = [40, 44, 72, 76, 2, 12]
    V_XB = 48
    V_WB = [80, 104]
    V_ACC = 128
    S_XS, S_WS, S_OS, S_PS = 8, 12, 16, 20
    S_WAVE, S_B0, S_N0 = 24, 25, 26
    S_MX, S_MW = 27, 28
    S_DELTA, S_CNT = 29, 30
    S_WO = [32, 33, 34, 35, 36, 37]
    S_K = 38
    S_T = 40
    S_XO = [None, 56, 57, 58, 31, 38, 39, 96]
    S_WLIM = 59
    S_STAMP = 60
    S_SO = 78

    def acc(sp, bg, d): return V_ACC + ((sp * 2 + bg) * 2 + d) * 4
    def wfrag(p, t, d): return V_WB[p] + (t * 2 + d) * 4 if p < 2 else V_W2[t * 2 + d]

    g.raw(HEADER + f"; @launch grid=(256,1,1) block=(512,1,1) lds=163840")
    g.raw('.amdgcn_target "amdgcn-amd-amdhsa--gfx950"')
    g.raw(".text")
    g.raw(f".globl {KN}")
    g.raw(".p2align 8")
    g.raw(f".type {KN},@function")
    g.label(KN)
    g("s_cmp_ge_u32 s2, 256")
    g("s_cbranch_scc1 L_end")
    if o.stamp:
        g(f"s_memtime s[{S_STAMP}:{S_STAMP+1}]")
        g(f"s_memrealtime s[{S_STAMP+2}:{S_STAMP+3}]")
    g("s_load_dwordx4 s[4:7], s[0:1], 0")
    g("s_load_dwordx8 s[44:51], s[0:1], 16")
    g("s_load_dwordx2 s[52:53], s[0:1], 48")
    if o.stamp:
        g("s_load_dwordx2 s[54:55], s[0:1], 64")
    g(f"v_lshrrev_b32 v{V_T}, 6, v0")
    if o.codepf:
        g("s_getpc_b64 s[94:95]")
        g.label("L_pc")
        g(f"v_lshlrev_b32 v{V_T+1}, 7, v0")
        g(f"v_cmp_gt_u32 vcc, L_end-L_pc, v{V_T+1}")
        g("s_and_saveexec_b64 s[92:93], vcc")
        g("s_cbranch_execz L_nopf")
        g(f"global_load_dword v10, v{V_T+1}, s[94:95]")
        g.label("L_nopf")
        g("s_mov_b64 exec, -1")
    g(f"v_readfirstlane_b32 s{S_WAVE}, v{V_T}")
    g("v_and_b32 v0, 63, v0")
    g("s_and_b32 s3, s2, 7")
    g(f"s_lshr_b32 s{S_T}, s2, 3")
    if o.map == '8x4':
        g(f"s_lshr_b32 s{S_B0}, s3, 1")
        g(f"s_lshl_b32 s{S_B0}, s{S_B0}, 3")
        g(f"s_lshr_b32 s{S_T+1}, s{S_T}, 2")
        g(f"s_add_u32 s{S_B0}, s{S_B0}, s{S_T+1}")
        g(f"s_and_b32 s{S_N0}, s3, 1")
        g(f"s_lshl_b32 s{S_N0}, s{S_N0}, 2")
        g(f"s_and_b32 s{S_T+1}, s{S_T}, 3")
        g(f"s_add_u32 s{S_N0}, s{S_N0}, s{S_T+1}")
    elif o.map == '4x8':
        g(f"s_lshl_b32 s{S_B0}, s3, 2")
        g(f"s_lshr_b32 s{S_T+1}, s{S_T}, 3")
        g(f"s_add_u32 s{S_B0}, s{S_B0}, s{S_T+1}")
        g(f"s_and_b32 s{S_N0}, s{S_T}, 7")
    elif o.map == '16x2':
        g(f"s_lshr_b32 s{S_B0}, s3, 2")
        g(f"s_lshl_b32 s{S_B0}, s{S_B0}, 4")
        g(f"s_lshr_b32 s{S_T+1}, s{S_T}, 1")
        g(f"s_add_u32 s{S_B0}, s{S_B0}, s{S_T+1}")
        g(f"s_and_b32 s{S_N0}, s3, 3")
        g(f"s_lshl_b32 s{S_N0}, s{S_N0}, 1")
        g(f"s_and_b32 s{S_T+1}, s{S_T}, 1")
        g(f"s_add_u32 s{S_N0}, s{S_N0}, s{S_T+1}")
    g(f"s_lshl_b32 s{S_B0}, s{S_B0}, 19")
    g(f"s_lshl_b32 s{S_N0}, s{S_N0}, 8")
    g(f"s_and_b32 s{S_T}, s{S_WAVE}, 3")
    g(f"s_cmp_lt_u32 s{S_WAVE}, 4")
    g("s_cbranch_scc1 L_consumer")

    g(f"v_lshrrev_b32 v{V_T}, 4, v0")
    g(f"s_and_b32 s{S_T+2}, s{S_T}, 1")
    g(f"s_lshl_b32 s{S_T+3}, s{S_T+2}, 1")
    g(f"v_lshl_add_u32 v{V_T+1}, v{V_T}, 2, s{S_T+3}")
    g(f"v_xor_b32 v{V_T+1}, v{V_T+1}, v0")
    g(f"v_and_b32 v{V_T+1}, 15, v{V_T+1}")
    g(f"v_lshlrev_b32 v{V_T+1}, 4, v{V_T+1}")
    g(f"v_lshl_add_u32 v{V_WD}, v{V_T}, 11, v{V_T+1}")
    g(f"s_lshl_b32 s{S_T+1}, s{S_T}, 14")
    g(f"v_add_u32 v{V_WD}, s{S_T+1}, v{V_WD}")
    g(f"s_lshl_b32 s{S_T+3}, s{S_T+2}, 2")
    g(f"v_xor_b32 v{V_T+1}, v{V_T}, v0")
    g(f"v_xor_b32 v{V_T+1}, s{S_T+3}, v{V_T+1}")
    g(f"v_and_b32 v{V_T+1}, 7, v{V_T+1}")
    g(f"v_lshlrev_b32 v{V_T+1}, 4, v{V_T+1}")
    g(f"v_lshrrev_b32 v{V_T+2}, 3, v0")
    g(f"v_lshl_add_u32 v{V_XD}, v{V_T+2}, 14, v{V_T+1}")
    g(f"s_lshr_b32 s{S_T+3}, s{S_T}, 1")
    g(f"s_lshl_b32 s{S_T+1}, s{S_T+2}, 17")
    g(f"s_lshl_b32 s{S_MX}, s{S_T+3}, 11")
    g(f"s_add_u32 s{S_T+1}, s{S_T+1}, s{S_MX}")
    g(f"v_add_u32 v{V_XD}, s{S_T+1}, v{V_XD}")
    g(f"s_lshl_b32 s{S_MX}, s{S_T+3}, 12")
    g(f"s_lshl_b32 s{S_T+1}, s{S_T+2}, 10")
    g(f"s_add_u32 s{S_MX}, s{S_MX}, s{S_T+1}")
    for j in range(1, 6):
        t, qq = j >> 1, j & 1
        g(f"s_mov_b32 s{S_WO[j]}, {t * 2097152 + qq * 8192 - (j % 4) * 1024}")
    for i in range(1, 8):
        g(f"s_mov_b32 s{S_XO[i]}, {(i >> 2) * 262144 + (i & 3) * 4096}")
    g(f"s_mul_i32 s{S_MW}, s{S_T}, {WREG}")
    g(f"s_add_u32 s{S_MW}, s{S_MW}, {WBASE}")
    g(f"s_add_u32 s{S_WLIM}, s{S_MW}, {4*WSLOT}")
    g(f"s_mov_b32 s{S_XS+3}, 0x20000")
    g(f"s_mov_b32 s{S_WS+3}, 0x20000")
    g(f"s_sub_u32 s{S_XS+2}, 16777216, s{S_B0}")
    g(f"s_sub_u32 s{S_WS+2}, 6291456, s{S_N0}")
    if o.stamp: g("s_memtime s[84:85]")
    g("s_waitcnt lgkmcnt(0)")
    if o.stamp: g("s_memtime s[86:87]")
    g(f"s_add_u32 s{S_WS}, s6, s{S_N0}")
    g(f"s_addc_u32 s{S_WS+1}, s7, 0")
    g(f"s_add_u32 s{S_XS}, s4, s{S_B0}")
    g(f"s_addc_u32 s{S_XS+1}, s5, 0")
    xs = f"s[{S_XS}:{S_XS+3}]"; ws = f"s[{S_WS}:{S_WS+3}]"
    def ld(v, srd, so, off, fl=""):
        offs = f" offset:{off}" if off else ""
        return f"buffer_load_dwordx4 v{v}, {srd}, {so} offen{offs}{fl} lds"
    def x_chunk(s0=0, s1=8):
        for i in range(s0, s1):
            c = (i & 3) * 8192 + (i >> 2) * 2048
            g(f"s_add_u32 m0, s{S_MX}, {c}" if c else f"s_mov_b32 m0, s{S_MX}")
            g("s_nop 0")
            g(ld(V_XD, xs, f"s{S_XO[i]}" if i else "0", 0, o.xfl))
        if s1 < 8: return
        g(f"s_add_u32 s{S_XS}, s{S_XS}, 128")
        g(f"s_addc_u32 s{S_XS+1}, s{S_XS+1}, 0")
        g(f"s_sub_u32 s{S_XS+2}, s{S_XS+2}, 128")
        g(f"s_xor_b32 s{S_MX}, s{S_MX}, {XSLOT}")
    def w_stage():
        for j in range(6):
            if j == 0: g(f"s_mov_b32 m0, s{S_MW}"); g("s_nop 0")
            if j == 4: g(f"s_add_u32 m0, s{S_MW}, 4096"); g("s_nop 0")
            g(ld(V_WD, ws, f"s{S_WO[j]}" if j else "0", (j % 4) * 1024, o.wfl))
        g(f"s_add_u32 s{S_WS}, s{S_WS}, 65536")
        g(f"s_addc_u32 s{S_WS+1}, s{S_WS+1}, 0")
        g(f"s_sub_u32 s{S_WS+2}, s{S_WS+2}, 65536")
        g(f"s_add_u32 s{S_MW}, s{S_MW}, {WSLOT}")
        g(f"s_cmp_eq_u32 s{S_MW}, s{S_WLIM}")
        g(f"s_cselect_b32 s{S_T+1}, {4*WSLOT}, 0")
        g(f"s_sub_u32 s{S_MW}, s{S_MW}, s{S_T+1}")
    def lstamp(k):
        if o.stamp > 1:
            g("s_memrealtime s[80:81]")
            g("s_memtime s[82:83]")
            g(f"s_add_u32 m0, s{S_CNT}, {k}")
            g("s_waitcnt lgkmcnt(0)")
            g("v_writelane_b32 v30, s80, m0")
            g("v_writelane_b32 v31, s82, m0")
    n0 = len(g.lines)
    def otouch():
        if o.ctouch == 1:
            g(f"global_load_dword v4, v{V_TX}, s[94:95]")
        if o.otouch:
            g(f"buffer_load_dword v4, v{V_TX}, s[{S_OS}:{S_OS+3}], 0 offen{o.tfl}")
            g(f"v_{'subrev' if o.odelay else 'add'}_u32 v{V_TX}, {o.otouch * 2048}, v{V_TX}")
    w_stage(); x_chunk(); w_stage(); w_stage(); x_chunk(); w_stage()
    if o.otouch:
        g(f"s_lshl_b32 s{S_T+1}, s{S_T}, 17")
        g(f"s_add_u32 s{S_T+1}, s{S_T+1}, s{S_B0}")
        g(f"s_add_u32 s{S_T+1}, s{S_T+1}, s{S_N0}")
        g(f"s_add_u32 s{S_OS}, s52, s{S_T+1}")
        g(f"s_addc_u32 s{S_OS+1}, s53, 0")
        g(f"s_mov_b32 s{S_OS+2}, {63 * 2048 + 256}")
        g(f"s_mov_b32 s{S_OS+3}, 0x20000")
        g(f"v_lshrrev_b32 v{V_T}, 1, v0")
        g(f"v_and_b32 v{V_T+1}, 1, v0")
        g(f"v_lshlrev_b32 v{V_T+1}, 7, v{V_T+1}")
        g(f"v_lshl_add_u32 v{V_TX}, v{V_T}, 11, v{V_T+1}")
        g(f"v_cmp_gt_u32 vcc, {2 * o.otouch}, v0")
        g(f"v_mov_b32 v{V_T+1}, 0x7f000000")
        g("s_nop 0")
        g(f"v_cndmask_b32 v{V_TX}, v{V_T+1}, v{V_TX}, vcc")
        if o.odelay: g(f"v_add_u32 v{V_TX}, {14 * o.otouch * 2048}, v{V_TX}")
    if o.ctouch:
        g(f"s_mul_i32 s{S_T+1}, s{S_T}, 3072")
        g(f"s_add_u32 s{S_T+1}, s{S_T+1}, L_tail-L_pc")
        g(f"v_min_u32 v{V_T}, 23, v0")
        g(f"v_lshl_add_u32 v{V_TX}, v{V_T}, 7, s{S_T+1}")
        g(f"v_min_u32 v{V_TX}, L_end-L_pc, v{V_TX}")
    otouch()
    w_stage()
    nt = 1 if (o.otouch or o.ctouch == 1) else 0
    seg = g.lines[n0:]; del g.lines[n0:]
    marks = {o.i0: 9, o.i1: 11, o.i2: 14}
    k = 0
    for ln in seg:
        g.lines.append(ln)
        if "lds" in ln and "buffer_load" in ln:
            k += 1
            for mk in sorted(set([o.i0, o.i1, o.i2])):
                pass
            for bi, (at, need) in enumerate(((o.i0, 9), (o.i1, 11), (o.i2, 14), (o.i3, 20))):
                if k == at:
                    if o.stamp and bi == 0: g("s_memtime s[88:89]")
                    g(f"s_waitcnt vmcnt({k - need})")
                    if o.stamp and bi == 0: g("s_memtime s[90:91]")
                    if o.stamp and bi == 2: g("s_memtime s[92:93]")
                    g("s_barrier")
    g(f"s_mov_b32 s{S_CNT}, 0")
    seg_first = [0, o.h1, o.h1 + o.h2]
    def warm_entry(seg):
        g("s_mov_b64 exec, 0")
        for w in range(3):
            g(f"s_cmp_eq_u32 s{S_T}, {w}")
            g(f"s_cbranch_scc1 L_pad{4 * seg_first[seg] + w}")
        g(f"s_branch L_pad{4 * seg_first[seg] + 3}")
    g.label("L_ld_loop")
    g(f"s_waitcnt vmcnt({12 + nt})")
    g("s_barrier")
    x_chunk(); w_stage(); otouch()
    if o.ctouch == 2:
        g(f"s_cmp_lg_u32 s{S_CNT}, {o.cwhen}")
        g("s_cbranch_scc1 L_noct")
        g(f"global_load_dword v4, v{V_TX}, s[94:95]")
        g.label("L_noct")
    if o.warm:
        g(f"s_cmp_lg_u32 s{S_CNT}, 26")
        g("s_cbranch_scc1 L_back1")
        warm_entry(0)
        g.label("L_back1")
        g("s_mov_b64 exec, -1")
    lstamp(0)
    g(f"s_add_u32 s{S_CNT}, s{S_CNT}, 2")
    g(f"s_waitcnt vmcnt({20 + 2 * nt})")
    g("s_barrier")
    g(f"s_cmp_ge_u32 s{S_CNT}, 28")
    g("s_cbranch_scc1 L_ld_done")
    w_stage()
    lstamp(-1)
    g("s_branch L_ld_loop")
    g.label("L_ld_done")
    if o.warm:
        warm_entry(1)
        g.label("L_back2")
        g("s_mov_b64 exec, -1")
    g("s_waitcnt vmcnt(0)")
    g("s_barrier")
    lstamp(1)
    if o.stamp:
        g(f"s_lshl_b32 s{S_T+1}, s2, 2")
        g(f"s_add_u32 s{S_T+1}, s{S_T+1}, s{S_T}")
        g(f"s_lshl_b32 s{S_T+1}, s{S_T+1}, 8")
        g(f"s_add_u32 s{S_T+1}, s{S_T+1}, 65536")
        g(f"s_mov_b32 s{S_PS}, s54")
        g(f"s_mov_b32 s{S_PS+1}, s55")
        g(f"s_mov_b32 s{S_PS+2}, 0x100000")
        g(f"s_mov_b32 s{S_PS+3}, 0x20000")
        g(f"v_lshlrev_b32 v29, 2, v0")
        g("s_mov_b64 exec, 0xffffffff")
        g(f"buffer_store_dword v30, v29, s[{S_PS}:{S_PS+3}], s{S_T+1} offen")
        g(f"buffer_store_dword v31, v29, s[{S_PS}:{S_PS+3}], s{S_T+1} offen offset:128")
        for i, r in enumerate((84, 86, 88, 90, 92)):
            g(f"s_sub_u32 s{r}, s{r}, s{S_STAMP}")
            g(f"v_writelane_b32 v32, s{r}, {i}")
        g(f"s_add_u32 s{S_T+1}, s{S_T+1}, 262144")
        g("s_mov_b64 exec, -1")
        g(f"buffer_store_dword v32, v29, s[{S_PS}:{S_PS+3}], s{S_T+1} offen")
    if o.warm:
        warm_entry(2)
    g("s_endpgm")

    g.label("L_consumer")
    g(f"s_mov_b32 s{S_PS+2}, 2048")
    g(f"s_mov_b32 s{S_PS+3}, 0x20000")
    g(f"s_mov_b32 s{S_OS+3}, 0x20000")
    g(f"v_lshrrev_b32 v{V_T+2}, 4, v0")
    g(f"s_lshl_b32 s{S_T+1}, s{S_T}, 6")
    g(f"s_add_u32 s{S_T+1}, s{S_T+1}, s{S_N0}")
    g(f"v_lshl_add_u32 v{V_T}, v{V_T+2}, 3, s{S_T+1}")
    g("s_waitcnt lgkmcnt(0)")
    V_RAW = 32
    nraw = 4
    for pi in range(4):
        g(f"s_mov_b32 s{S_PS}, s{44+2*pi}")
        g(f"s_mov_b32 s{S_PS+1}, s{45+2*pi}")
        for d in range(2):
            g(f"buffer_load_dwordx2 {vr(V_RAW+pi*nraw+2*d,2)}, v{V_T}, s[{S_PS}:{S_PS+3}], 0 offen offset:{32*d}")
    g(f"v_and_b32 v{V_T}, 15, v0")
    g(f"v_lshrrev_b32 v{V_T+1}, 1, v{V_T}")
    g(f"v_xor_b32 v{V_T+1}, v{V_T+1}, v{V_T+2}")
    g(f"v_lshlrev_b32 v{V_T+1}, 4, v{V_T+1}")
    g(f"v_lshl_add_u32 v{V_XA[0]}, v{V_T}, 7, v{V_T+1}")
    g(f"v_xor_b32 v{V_XA[1]}, 64, v{V_XA[0]}")
    g(f"v_lshlrev_b32 v{V_T}, 14, v{V_T}")
    g(f"v_bfe_u32 v{V_T+1}, v0, 4, 1")
    g(f"v_lshl_add_u32 v{V_T}, v{V_T+1}, 5, v{V_T}")
    g(f"v_lshrrev_b32 v{V_T+1}, 5, v0")
    g(f"v_lshl_add_u32 v{V_T}, v{V_T+1}, 4, v{V_T}")
    g(f"s_lshl_b32 s{S_T+1}, s{S_T}, 6")
    g(f"v_add_u32 v{V_OUT}, s{S_T+1}, v{V_T}")
    if o.fakeline:
        g(f"v_lshrrev_b32 v{V_T}, 3, v0")
        g(f"v_lshlrev_b32 v{V_T}, 11, v{V_T}")
        g(f"v_and_b32 v{V_T+1}, 7, v0")
        g(f"v_lshl_add_u32 v{V_T}, v{V_T+1}, 4, v{V_T}")
        g(f"s_and_b32 s{S_T+1}, s{S_T}, 1")
        g(f"s_lshl_b32 s{S_T+1}, s{S_T+1}, 7")
        g(f"s_lshr_b32 s{S_T+2}, s{S_T}, 1")
        g(f"s_lshl_b32 s{S_T+2}, s{S_T+2}, 14")
        g(f"s_add_u32 s{S_T+1}, s{S_T+1}, s{S_T+2}")
        g(f"v_add_u32 v{V_OUT}, s{S_T+1}, v{V_T}")
    g(f"v_bfe_u32 v{V_T}, v0, 2, 2")
    g(f"v_xor_b32 v{V_T+1}, s{S_T}, v{V_T}")
    g(f"v_lshlrev_b32 v{V_T+1}, 6, v{V_T+1}")
    g(f"v_lshl_add_u32 v{V_T+1}, v{V_T}, 8, v{V_T+1}")
    g(f"v_mul_u32_u24 v{V_T+3}, {WREG}, v{V_T+2}")
    g(f"v_add_u32 v{V_T+1}, v{V_T+1}, v{V_T+3}")
    g(f"v_and_b32 v{V_T+2}, 1, v{V_T+2}")
    g(f"v_lshl_add_u32 v{V_T+1}, v{V_T+2}, 5, v{V_T+1}")
    g(f"v_and_b32 v{V_T+2}, 3, v0")
    g(f"v_lshl_add_u32 v{V_T+1}, v{V_T+2}, 3, v{V_T+1}")
    g(f"v_add_u32 v{V_WA[0]}, {WBASE}, v{V_T+1}")
    g(f"v_xor_b32 v{V_WA[1]}, 32, v{V_WA[0]}")
    g(f"s_add_u32 s{S_T+1}, s{S_B0}, s{S_N0}")
    g(f"s_add_u32 s{S_OS}, s52, s{S_T+1}")
    g(f"s_addc_u32 s{S_OS+1}, s53, 0")
    g(f"s_sub_u32 s{S_OS+2}, 16777216, s{S_T+1}")
    g(f"s_mov_b32 s{S_K}, 0xbfb8aa3b")
    g(f"s_mov_b32 s{S_K+1}, 0xbfb8aa3b")
    for i in range(0, 128, 2):
        g(f"v_mov_b64 v[{V_ACC+i}:{V_ACC+i+1}], 0")
    bn_ops = []
    def gb(x): bn_ops.append(x)
    gb("s_waitcnt vmcnt(0)")
    M_, V_, G_, B_ = (V_RAW + i * nraw for i in range(4))
    TA, TB = V_T, V_T + 1
    gb(f"s_mov_b32 s{S_T+1}, 0x3727c5ac")
    def unpack(dst, src, hi):
        if hi: gb(f"v_and_b32 v{dst}, 0xffff0000, v{src}")
        else:  gb(f"v_lshlrev_b32 v{dst}, 16, v{src}")
    for k in range(nraw):
        lo, hi = V_SC + 2 * k, V_SC + 2 * k + 1
        unpack(lo, V_ + k, 0); unpack(hi, V_ + k, 1)
        gb(f"v_add_f32 v{lo}, s{S_T+1}, v{lo}")
        gb(f"v_add_f32 v{hi}, s{S_T+1}, v{hi}")
        gb(f"v_cvt_pk_bf16_f32 v{TA}, v{lo}, v{hi}")
        unpack(lo, TA, 0); unpack(hi, TA, 1)
        gb(f"v_sqrt_f32 v{lo}, v{lo}")
        gb(f"v_sqrt_f32 v{hi}, v{hi}")
        gb(f"v_cvt_pk_bf16_f32 v{TA}, v{lo}, v{hi}")
        unpack(lo, TA, 0); unpack(hi, TA, 1)
        gb(f"v_rcp_f32 v{lo}, v{lo}")
        gb(f"v_rcp_f32 v{hi}, v{hi}")
        gb(f"v_cvt_pk_bf16_f32 v{TA}, v{lo}, v{hi}")
        unpack(lo, TA, 0); unpack(hi, TA, 1)
        unpack(TA, G_ + k, 0); unpack(TB, G_ + k, 1)
        gb(f"v_mul_f32 v{lo}, v{lo}, v{TA}")
        gb(f"v_mul_f32 v{hi}, v{hi}, v{TB}")
        gb(f"v_cvt_pk_bf16_f32 v{TA}, v{lo}, v{hi}")
        unpack(lo, TA, 0); unpack(hi, TA, 1)
        slo, shi = V_SH + 2 * k, V_SH + 2 * k + 1
        unpack(slo, B_ + k, 0); unpack(shi, B_ + k, 1)
        unpack(TA, M_ + k, 0); unpack(TB, M_ + k, 1)
        gb(f"v_fma_f32 v{slo}, -v{TA}, v{lo}, v{slo}")
        gb(f"v_fma_f32 v{shi}, -v{TB}, v{hi}, v{shi}")
        for r in (lo, hi, slo, shi):
            gb(f"v_mul_f32 v{r}, s{S_K}, v{r}")

    def xread(p, f, slot):
        s, q = f & 7, f >> 3
        return f"ds_read_b128 {vr(V_XB + slot * 4,4)}, v{V_XA[p]} offset:{s * 4096 + q * 2048}"
    def wread(p, t, d, h, slot=None):
        dst = wfrag(p, t, d) + 2 * h
        slot = p if slot is None else slot
        return f"ds_read_b64_tr_b16 {vr(dst,2)}, v{V_WA[d]} offset:{slot * WSLOT + t*2048 + h*1024}"
    def mf(sp, q, d, p, t, slot, xtag, wst):
        a = acc(sp, q, d)
        return ("m", f"v_mfma_f32_16x16x32_bf16 {vr(a,4)}, {vr(wfrag(p,t,d),4)}, {vr(V_XB + slot * 4,4)}, {vr(a,4)}",
                [xtag, ("w", t, d, 0, wst), ("w", t, d, 1, wst)], (sp, q))
    def out_group(p, gam, st):
        sp, q = gam & 7, gam >> 3
        out = []
        ds = (0, 1) if (not o.snake or sp % 2 == 0) else (1, 0)
        for di, d in enumerate(ds):
            for t in ((0, 1, 2) if (not o.snake or di == 0) else (2, 1, 0)):
                s_ = sp + t - 1
                if 0 <= s_ <= 7:
                    f = q * 8 + s_
                    out.append(mf(sp, q, d, p, t, f % NXB, ("x", f, st), st))
        return out
    worder = [(t, d, h) for (t, d) in ((1, 0), (2, 0), (1, 1), (2, 1), (0, 0), (0, 1)) for h in range(2)]

    def stage_stream(p, st, first=False):
        items = []
        groups = [out_group(p, f, st) for f in range(16)]
        nm = sum(len(x) for x in groups)
        fill = [[] for _ in range(nm)]
        start = [sum(len(x) for x in groups[:f]) for f in range(17)]
        fb = 16 - L
        for f in range(16):
            if f + L < 16:
                fill[start[f]].append(("l", xread(p, f + L, (f + L) % NXB), ("x", f + L, st)))
        ib = start[fb + 1] - 1
        fill[ib].append(("bar",))
        fill[ib].append(("l", xread(1 - p, 0, 0), ("x", 0, st + 1)))
        taken = set()
        for f in range(fb + 1, 16):
            fill[start[f]].append(("l", xread(1 - p, f + L - 16, (f + L - 16) % NXB), ("x", f + L - 16, st + 1)))
            taken.add(start[f])
        free = [i for i in range(ib + 1, nm) if i not in taken]
        for k, w_ in enumerate(worder):
            fill[free[k]].append(("l", wread(1 - p, *w_), ("w",) + w_ + (st + 1,)))
        fill[start[15 - L] + 1].append(("i", f"v_xor_b32 v{V_XA[p]}, {XSLOT}, v{V_XA[p]}"))
        if p == 1:
            fill[1].append(("i", f"v_add_u32 v{V_WA[0]}, s{S_DELTA}, v{V_WA[0]}"))
            fill[2].append(("i", f"v_add_u32 v{V_WA[1]}, s{S_DELTA}, v{V_WA[1]}"))
            fill[3].append(("i", f"s_sub_u32 s{S_DELTA}, 0, s{S_DELTA}"))
        elif first:
            fill[start[10 - L]].insert(0, ("bar_nowait",))
            ops = list(bn_ops); i = o.bn0
            while ops:
                budget = 2 - sum(1 for it in fill[i] if it[0] == "i")
                while ops and budget > 0:
                    c = 2 if ops[0].startswith(("v_sqrt", "v_rcp")) else (0 if ops[0].startswith("s_") else 1)
                    if c > budget and budget < 2: break
                    fill[i].append(("i", ops.pop(0))); budget -= c
                i += 1
        else:
            fill[nm - 3].append(("i", f"s_add_u32 s{S_CNT}, s{S_CNT}, 2"))
            fill[nm - 2].append(("i", f"s_cmp_lt_u32 s{S_CNT}, 28"))
        i = 0
        for f in range(16):
            for m in groups[f]:
                items.append(m)
                items += fill[i]
                i += 1
        return items

    class Q:
        def __init__(self): self.seq = []; self.done = -1
        def run(self, items, first=False):
            cur = []
            for item in items:
                if item[0] == "m":
                    need = -1
                    for key in item[2]:
                        idx = [i for i, t_ in enumerate(self.seq) if t_ == key]
                        if idx: need = max(need, idx[-1])
                        else: assert first, key
                    if need > self.done:
                        cnt = min(len(self.seq) - 1 - need, 15)
                        cur.append(f"s_waitcnt lgkmcnt({cnt})")
                        self.done = len(self.seq) - 1 - cnt
                    cur.append(item[1])
                elif item[0] == "l":
                    self.seq.append(item[2]); cur.append(item[1])
                elif item[0] == "bar":
                    cur.append("s_waitcnt lgkmcnt(0)"); cur.append("s_barrier")
                    self.done = len(self.seq) - 1
                elif item[0] == "bar_nowait":
                    cur.append("s_barrier")
                else:
                    cur.append(item[1])
            return cur
    q = Q()
    stage0 = q.run(stage_stream(0, 0, first=True), first=True)
    body = q.run(stage_stream(1, 1)) + q.run(stage_stream(0, 2))
    body2 = q.run(stage_stream(1, 3)) + q.run(stage_stream(0, 4))
    assert body == body2

    def unit_ops(sp, bg, ui, pk):
        A = [acc(sp, bg, d) + j for d in range(2) for j in range(4)]
        E = V_E[ui % 2]
        so = S_SO + ui % 4
        ops = []
        if pk:
            for i in range(0, 8, 2):
                ops.append((f"v_pk_fma_f32 {vr(A[i],2)}, {vr(A[i],2)}, {vr(V_SC+i,2)}, {vr(V_SH+i,2)}", 1))
        else:
            for i in range(8): ops.append((f"v_fma_f32 v{A[i]}, v{A[i]}, v{V_SC+i}, v{V_SH+i}", 1))
        for i in range(8): ops.append((f"v_exp_f32 v{E+i}, v{A[i]}", 2))
        if pk:
            for i in range(0, 8, 2):
                ops.append((f"v_pk_fma_f32 {vr(E+i,2)}, {vr(E+i,2)}, s[{S_K}:{S_K+1}], s[{S_K}:{S_K+1}]", 1))
        else:
            for i in range(8): ops.append((f"v_fma_f32 v{E+i}, v{E+i}, s{S_K}, s{S_K}", 1))
        for i in range(8): ops.append((f"v_rcp_f32 v{E+i}, v{E+i}", 2))
        if pk:
            for i in range(0, 8, 2):
                ops.append((f"v_pk_mul_f32 {vr(A[i],2)}, {vr(A[i],2)}, {vr(E+i,2)}", 1))
        else:
            for i in range(8): ops.append((f"v_mul_f32 v{A[i]}, v{A[i]}, v{E+i}", 1))
        P = A[0]
        for i in range(4): ops.append((f"v_cvt_pk_bf16_f32 v{P+i}, v{A[2*i]}, v{A[2*i+1]}", 1))
        ops.append((f"s_mov_b32 s{so}, {(bg * 128 + sp) * 2048 if not o.fakeline else (sp * 2 + bg) * 32768}", 0))
        ops.append((f"v_permlane16_swap_b32 v{P}, v{P+2}", 1))
        ops.append((f"v_permlane16_swap_b32 v{P+1}, v{P+3}", 1))
        ops.append((f"buffer_store_dwordx4 {vr(P,4)}, v{V_OUT}, s[{S_OS}:{S_OS+3}], s{so} offen{o.stflags}", 1))
        return ops

    tail = []
    pend = []
    if True:
        st0 = 5
        NT, LT = 6, 5
        wset = [1, 0, 2]; xpar = [1, 0, 1]
        order = {0: [((0,), 0), ((0,), 1), ((0,), 2), ((0,), 3), ((0,), 4), ((1, 2), 0), ((1, 2), 1), ((0,), 5),
                     ((1, 2), 2), ((1, 2), 3), ((1, 2), 4), ((1, 2), 5)],
                 1: [((0,), 0), ((0,), 1), ((0,), 2), ((0,), 3), ((1,), 0), ((1,), 1), ((0,), 4), ((2,), 0), ((2,), 1), ((0,), 5),
                     ((1, 2), 2), ((1, 2), 3), ((1, 2), 4), ((1, 2), 5)]}[o.tord]
        order += [((0, 1, 2), f) for f in range(6, 16)]
        assert L == 6 and sum(len(ks) for ks, f in order) == 48
        slot = {}
        for f in range(6): slot[(0, f)] = f
        freeat = {}
        for i, (ks, f) in enumerate(order):
            if 0 in ks and f < 6: freeat[f] = i
        reads = []
        for i, (ks, f) in enumerate(order):
            for k in ks:
                if k == 0 and f < 6: continue
                sl = min(freeat, key=lambda z: freeat[z])
                assert freeat[sl] < i
                reads.append((freeat[sl] + 1, (k, f), sl))
                slot[(k, f)] = sl; freeat[sl] = i
        def pos_group(ks, f):
            s_, q = f & 7, f >> 3
            out = []
            for t in (2, 1, 0):
                sp = s_ - t + 1
                if not 0 <= sp <= 7: continue
                for d in range(2):
                    for k in ks:
                        out.append(mf(sp, q, d, wset[k], t, slot[(k, f)], ("x", f, st0 + k), st0 + k))
            return out
        groups = [pos_group(ks, f) for (ks, f) in order]
        nm = sum(len(x) for x in groups)
        start = [sum(len(x) for x in groups[:i]) for i in range(len(order) + 1)]
        fill = [[] for _ in range(nm)]
        fill[0].append(("i", f"v_xor_b32 v{V_XA2}, {XSLOT}, v{V_XA[1]}"))
        fill[0].append(("i", f"v_add_u32 v{V_WA[0]}, s{S_DELTA}, v{V_WA[0]}"))
        fill[1].append(("i", f"v_add_u32 v{V_WA[1]}, s{S_DELTA}, v{V_WA[1]}"))
        fill[o.tbar].append(("bar_nowait",))
        if o.stamp:
            fill[o.tbar].append(("i", "s_memtime s[84:85]"))
            fill[nm - 1].append(("i", "s_memtime s[86:87]"))
        for (gi, (k, f), sl) in reads:
            txt = xread(xpar[k], f, sl)
            if k == 2: txt = txt.replace(f"v{V_XA[1]} ", f"v{V_XA2} ")
            i_ = max(start[gi], o.tbar + 1)
            while any(it[0] == "l" for it in fill[i_]): i_ += 1
            fill[i_].append(("l", txt, ("x", f, st0 + k)))
        free = [i for i in range(o.tbar + 1, nm) if not fill[i]]
        tw = [(t, d, h) for (t, d) in ((1, 0), (1, 1), (0, 0), (0, 1), (2, 0), (2, 1)) for h in range(2)]
        l1 = [("l", wread(0, *w_, slot=0), ("w",) + w_ + (st0 + 1,)) for w_ in tw]
        l2 = [("l", wread(2, *w_, slot=1), ("w",) + w_ + (st0 + 2,)) for w_ in tw]
        if o.tord == 0:
            wl = [x_ for j in range(0, 12, 2) for x_ in l1[j:j+2] + l2[j:j+2]]
        else:
            wl = l1 + l2
        for k, it in enumerate(wl):
            fill[free[k]].append(it)
        flat = [m for gr in groups for m in gr]
        last = {}
        for i, m in enumerate(flat): last[m[3]] = i
        units = sorted(last, key=lambda u: last[u])
        ui = 0; ops = []; ready = 0
        queue = []
        nstart = 0
        for i in range(nm):
            budget = o.budget - sum(1 for it in fill[i] if it[0] == "l") * o.ldscost
            while budget > 0:
                if not queue:
                    if nstart < len(units) and last[units[nstart]] + o.gap <= i:
                        queue = unit_ops(*units[nstart], nstart, False); nstart += 1
                    else: break
                txt, c = queue[0]
                if c > budget and budget < o.budget: break
                fill[i].append(("i", txt)); queue.pop(0); budget -= c
        items = []
        for i, m in enumerate(flat):
            items.append(m); items += fill[i]
        tail = q.run(items)
        pend = [t for t, c in queue]
        rest_units = units[nstart:]
        ubase = nstart

    g("s_barrier")
    if o.stamp:
        g(f"s_memtime s[{S_STAMP+4}:{S_STAMP+5}]")
        g(f"s_memrealtime s[{S_STAMP+14}:{S_STAMP+15}]")
        g("s_waitcnt lgkmcnt(0)")
    for w_ in worder[:4]: g(wread(0, *w_))
    for f in range(2): g(xread(0, f, f))
    for w_ in worder[4:]: g(wread(0, *w_))
    for f in range(2, L): g(xread(0, f, f))
    g(f"s_mov_b32 s{S_DELTA}, {2*WSLOT}")
    g(f"s_mov_b32 s{S_CNT}, 0")
    if o.prio: g(f"s_setprio {o.prio}")
    g("s_waitcnt lgkmcnt(0)")
    g("s_barrier")
    stage0p, n_ins0 = hz.pad(stage0)
    sys.stderr.write(f"stage0: {n_ins0} nops inserted\n")
    if o.stamp: g("s_memtime s[88:89]")
    for s_ in stage0p: g(s_)
    if o.stamp: g("s_memtime s[90:91]")
    g.raw(".p2align 6")
    g.label("L_loop")
    for s_ in body: g(s_)
    g("s_cbranch_scc1 L_loop")
    g.label("L_tail")
    if o.dummy:
        for i in range(32, 48): g(f"v_mov_b32 v{i}, 0")
        g(f"s_mov_b32 s{S_T+2}, 0")
        g.label("L_dummy")
        for i in range(88):
            a = 32 + (i % 4) * 4
            g(f"v_mfma_f32_16x16x32_bf16 v[{a}:{a+3}], {vr(V_WB[1] + (i % 6) * 4, 4)}, {vr(V_XB + ((i // 6) % 6) * 4, 4)}, v[{a}:{a+3}]")
        g(f"s_add_u32 s{S_T+2}, s{S_T+2}, 1")
        g(f"s_cmp_lt_u32 s{S_T+2}, {o.dummy}")
        g("s_cbranch_scc1 L_dummy")
        g("s_nop 15")
    if o.stamp:
        g(f"s_memtime s[{S_STAMP+6}:{S_STAMP+7}]")
        g(f"s_memrealtime s[{S_STAMP+16}:{S_STAMP+17}]")
    fin = list(tail) + list(pend)
    for j, (sp, bg) in enumerate(rest_units):
        fin += [txt for txt, c in unit_ops(sp, bg, ubase + j, o.pk)]
    padded, n_ins = hz.pad(body[-24:] + fin)
    assert padded[:24] == body[-24:]
    sys.stderr.write(f"tail: {ubase} units started under MFMA, {len(pend)} pending ops, {n_ins} nops inserted\n")
    lines = padded[24:]
    if o.warm:
        def size(t):
            op = t.split(" ")[0]
            if op in ("s_waitcnt", "s_barrier", "s_nop", "v_exp_f32", "v_rcp_f32", "v_mul_f32", "v_permlane16_swap_b32", "v_add_u32"): return 4
            if op == "s_mov_b32": return 4 if t.endswith(", 0") else 8
            return 8
        total = sum(size(t) for t in lines)
        npad = total // o.warm + 1
        npad = (npad + 3) // 4 * 4
        out_ = []; acc_ = 0; k = 0
        for t in lines:
            if acc_ >= k * total / npad and k < npad:
                hop = k // 4
                if hop == o.h1 - 1: tgt = "L_back1"
                elif hop == o.h1 + o.h2 - 1: tgt = "L_back2"
                elif k + 4 >= npad: tgt = "L_end"
                else: tgt = f"L_pad{k + 4}"
                out_.append(f"L_pad{k}:"); out_.append(f"s_cbranch_execz {tgt}")
                k += 1
            out_.append(t); acc_ += size(t)
        assert k == npad, (k, npad)
        sys.stderr.write(f"warm pads: {npad}\n")
        lines = out_
    for s_ in lines:
        if s_.endswith(":"): g.label(s_[:-1])
        else: g(s_)
    if o.stamp:
        g(f"s_memtime s[{S_STAMP+8}:{S_STAMP+9}]")
        g("s_waitcnt vmcnt(0)")
        g(f"s_memtime s[{S_STAMP+10}:{S_STAMP+11}]")
        g(f"s_memrealtime s[{S_STAMP+12}:{S_STAMP+13}]")
        g("s_waitcnt lgkmcnt(0)")
        g(f"s_lshl_b32 s{S_T+1}, s2, 2")
        g(f"s_add_u32 s{S_T+1}, s{S_T+1}, s{S_T}")
        g(f"s_lshl_b32 s{S_T+1}, s{S_T+1}, 6")
        g(f"s_mov_b32 s{S_PS}, s54")
        g(f"s_mov_b32 s{S_PS+1}, s55")
        g(f"s_mov_b32 s{S_PS+2}, 0x100000")
        g(f"v_mov_b32 v{V_T}, s{S_T+1}")
        S = S_STAMP
        for i, r in enumerate([S, S+2, S+4, S+14, S+6, S+16, 84, 86, S+8, S+10, S+12, 88, 90]):
            g(f"v_mov_b32 v{V_WB[0]+i}, s{r}")
        g("s_mov_b64 exec, 1")
        for i in range(4):
            g(f"buffer_store_dwordx4 {vr(V_WB[0]+4*i,4)}, v{V_T}, s[{S_PS}:{S_PS+3}], 0 offen offset:{16*i}")
    g.label("L_end")
    g("s_endpgm")
    g.raw('.section .rodata,"a"')
    g.raw(".p2align 6")
    g.raw(f".amdhsa_kernel {KN}")
    g.raw("  .amdhsa_next_free_vgpr 256")
    g.raw("  .amdhsa_next_free_sgpr 100")
    g.raw("  .amdhsa_accum_offset 256")
    g.raw("  .amdhsa_group_segment_fixed_size 0")
    g.raw("  .amdhsa_kernarg_size 72")
    g.raw("  .amdhsa_user_sgpr_count 2")
    g.raw("  .amdhsa_user_sgpr_kernarg_segment_ptr 1")
    g.raw("  .amdhsa_system_sgpr_workgroup_id_x 1")
    g.raw(".end_amdhsa_kernel")
    return g.text()

if __name__ == "__main__":
    ap = argparse.ArgumentParser()
    ap.add_argument("--lead", type=int, default=6)
    ap.add_argument("--stflags", default="sc1")
    ap.add_argument("--tfl", default="")
    ap.add_argument("--stamp", type=int, default=0)
    ap.add_argument("--codepf", type=int, default=1)
    ap.add_argument("--tail", type=int, default=1)
    ap.add_argument("--pk", type=int, default=1)
    ap.add_argument("--touch", type=int, default=0)
    ap.add_argument("--budget", type=int, default=2)
    ap.add_argument("--ldscost", type=int, default=1)
    ap.add_argument("--fakeline", type=int, default=0)
    ap.add_argument("--fine", type=int, default=0)
    ap.add_argument("--i0", type=int, default=16)
    ap.add_argument("--i1", type=int, default=18)
    ap.add_argument("--i2", type=int, default=21)
    ap.add_argument("--i3", type=int, default=30)
    ap.add_argument("--tbar", type=int, default=1)
    ap.add_argument("--prio", type=int, default=0)
    ap.add_argument("--bn0", type=int, default=2)
    ap.add_argument("--dummy", type=int, default=0)
    ap.add_argument("--otouch", type=int, default=0)
    ap.add_argument("--odelay", type=int, default=0)
    ap.add_argument("--map", default="8x4")
    ap.add_argument("--ctouch", type=int, default=0)
    ap.add_argument("--cwhen", type=int, default=22)
    ap.add_argument("--warm", type=int, default=0)
    ap.add_argument("--h1", type=int, default=3)
    ap.add_argument("--h2", type=int, default=2)
    ap.add_argument("--xfl", default="")
    ap.add_argument("--wfl", default="")
    ap.add_argument("--tord", type=int, default=0)
    ap.add_argument("--snake", type=int, default=0)
    ap.add_argument("--gap", type=int, default=5)
    ap.add_argument("-o", default="-")
    o = ap.parse_args()
    for k in ("stflags", "tfl", "xfl", "wfl"):
        if getattr(o, k): setattr(o, k, " " + getattr(o, k))
    t = gen(o)
    if o.o == "-": sys.stdout.write(t)
    else: open(o.o, "w").write(t)
```

```python
import sys, argparse
from gen import HEADER, KN, G, vr
import hz

XSLOT = 32768
WBASE = 65536
WSLOT = 24576
WREG = 6144

def gen(o):
    g = G()
    L = o.lead
    NXB = 8
    V_XD, V_WD, V_TX = 1, 2, 3
    V_XA = [6, 7]
    V_WA = [8, 9]
    V_XA2 = 1
    V_OUT = 11
    V_T = 12
    V_SC, V_SH = 16, 24
    V_E = [32, 32]
    V_W2 = [40, 44, 72, 76, 2, 12]
    V_XB = 48
    V_WB = [80, 104]
    V_ACC = 128
    S_XS, S_WS, S_OS, S_PS = 8, 12, 16, 20
    S_WAVE, S_B0, S_N0 = 24, 25, 26
    S_MX, S_MW = 27, 28
    S_DELTA, S_CNT = 29, 30
    S_WO = [32, 33, 34, 35, 36, 37]
    S_K = 38
    S_T = 40
    S_XO = [None, 56, 57, 58, 31, 38, 39, 96]
    S_WLIM = 59
    S_STAMP = 60
    S_SO = 78

    def acc(sp, bg, d): return V_ACC + ((sp * 2 + bg) * 2 + d) * 4
    def wfrag(p, t, d): return V_WB[p] + (t * 2 + d) * 4 if p < 2 else V_W2[t * 2 + d]

    g.raw(HEADER + f"; @launch grid=(256,1,1) block=(512,1,1) lds=163840")
    g.raw('.amdgcn_target "amdgcn-amd-amdhsa--gfx950"')
    g.raw(".text")
    g.raw(f".globl {KN}")
    g.raw(".p2align 8")
    g.raw(f".type {KN},@function")
    g.label(KN)
    g("s_cmp_ge_u32 s2, 256")
    g("s_cbranch_scc1 L_end")
    if o.stamp:
        g(f"s_memtime s[{S_STAMP}:{S_STAMP+1}]")
        g(f"s_memrealtime s[{S_STAMP+2}:{S_STAMP+3}]")
    g("s_load_dwordx4 s[4:7], s[0:1], 0")
    g("s_load_dwordx8 s[44:51], s[0:1], 16")
    g("s_load_dwordx2 s[52:53], s[0:1], 48")
    if o.stamp:
        g("s_load_dwordx2 s[54:55], s[0:1], 64")
    g(f"v_lshrrev_b32 v{V_T}, 6, v0")
    if o.codepf:
        g("s_getpc_b64 s[94:95]")
        g.label("L_pc")
        if o.bnpro:
            g(f"v_xor_b32 v{V_T+1}, 256, v0")
            g(f"v_lshlrev_b32 v{V_T+1}, 7, v{V_T+1}")
        else:
            g(f"v_lshlrev_b32 v{V_T+1}, 7, v0")
        g(f"v_cmp_gt_u32 vcc, {'L_tail' if o.pfto else 'L_end'}-L_pc, v{V_T+1}")
        g("s_and_saveexec_b64 s[92:93], vcc")
        g("s_cbranch_execz L_nopf")
        g(f"global_load_dword v10, v{V_T+1}, s[94:95]")
        g.label("L_nopf")
        g("s_mov_b64 exec, -1")
    g(f"v_readfirstlane_b32 s{S_WAVE}, v{V_T}")
    g("v_and_b32 v0, 63, v0")
    g("s_and_b32 s3, s2, 7")
    g(f"s_lshr_b32 s{S_T}, s2, 3")
    if o.map == '8x4':
        g(f"s_lshr_b32 s{S_B0}, s3, 1")
        g(f"s_lshl_b32 s{S_B0}, s{S_B0}, 3")
        g(f"s_lshr_b32 s{S_T+1}, s{S_T}, 2")
        g(f"s_add_u32 s{S_B0}, s{S_B0}, s{S_T+1}")
        g(f"s_and_b32 s{S_N0}, s3, 1")
        g(f"s_lshl_b32 s{S_N0}, s{S_N0}, 2")
        g(f"s_and_b32 s{S_T+1}, s{S_T}, 3")
        g(f"s_add_u32 s{S_N0}, s{S_N0}, s{S_T+1}")
    elif o.map == '4x8':
        g(f"s_lshl_b32 s{S_B0}, s3, 2")
        g(f"s_lshr_b32 s{S_T+1}, s{S_T}, 3")
        g(f"s_add_u32 s{S_B0}, s{S_B0}, s{S_T+1}")
        g(f"s_and_b32 s{S_N0}, s{S_T}, 7")
    elif o.map == '16x2':
        g(f"s_lshr_b32 s{S_B0}, s3, 2")
        g(f"s_lshl_b32 s{S_B0}, s{S_B0}, 4")
        g(f"s_lshr_b32 s{S_T+1}, s{S_T}, 1")
        g(f"s_add_u32 s{S_B0}, s{S_B0}, s{S_T+1}")
        g(f"s_and_b32 s{S_N0}, s3, 3")
        g(f"s_lshl_b32 s{S_N0}, s{S_N0}, 1")
        g(f"s_and_b32 s{S_T+1}, s{S_T}, 1")
        g(f"s_add_u32 s{S_N0}, s{S_N0}, s{S_T+1}")
    g(f"s_lshl_b32 s{S_B0}, s{S_B0}, 19")
    g(f"s_lshl_b32 s{S_N0}, s{S_N0}, 8")
    g(f"s_and_b32 s{S_T}, s{S_WAVE}, 3")
    g(f"s_cmp_lt_u32 s{S_WAVE}, 4")
    g("s_cbranch_scc1 L_consumer")

    g(f"v_lshrrev_b32 v{V_T}, 4, v0")
    g(f"s_and_b32 s{S_T+2}, s{S_T}, 1")
    g(f"s_lshl_b32 s{S_T+3}, s{S_T+2}, 1")
    g(f"v_lshl_add_u32 v{V_T+1}, v{V_T}, 2, s{S_T+3}")
    g(f"v_xor_b32 v{V_T+1}, v{V_T+1}, v0")
    g(f"v_and_b32 v{V_T+1}, 15, v{V_T+1}")
    g(f"v_lshlrev_b32 v{V_T+1}, 4, v{V_T+1}")
    g(f"v_lshl_add_u32 v{V_WD}, v{V_T}, 11, v{V_T+1}")
    g(f"s_lshl_b32 s{S_T+1}, s{S_T}, 14")
    g(f"v_add_u32 v{V_WD}, s{S_T+1}, v{V_WD}")
    g(f"s_lshl_b32 s{S_T+3}, s{S_T+2}, 2")
    g(f"v_xor_b32 v{V_T+1}, v{V_T}, v0")
    g(f"v_xor_b32 v{V_T+1}, s{S_T+3}, v{V_T+1}")
    g(f"v_and_b32 v{V_T+1}, 7, v{V_T+1}")
    g(f"v_lshlrev_b32 v{V_T+1}, 4, v{V_T+1}")
    g(f"v_lshrrev_b32 v{V_T+2}, 3, v0")
    g(f"v_lshl_add_u32 v{V_XD}, v{V_T+2}, 14, v{V_T+1}")
    g(f"s_lshr_b32 s{S_T+3}, s{S_T}, 1")
    g(f"s_lshl_b32 s{S_T+1}, s{S_T+2}, 17")
    g(f"s_lshl_b32 s{S_MX}, s{S_T+3}, 11")
    g(f"s_add_u32 s{S_T+1}, s{S_T+1}, s{S_MX}")
    g(f"v_add_u32 v{V_XD}, s{S_T+1}, v{V_XD}")
    g(f"s_lshl_b32 s{S_MX}, s{S_T+3}, 12")
    g(f"s_lshl_b32 s{S_T+1}, s{S_T+2}, 10")
    g(f"s_add_u32 s{S_MX}, s{S_MX}, s{S_T+1}")
    for j in range(1, 6):
        t, qq = j >> 1, j & 1
        g(f"s_mov_b32 s{S_WO[j]}, {t * 2097152 + qq * 8192 - (j % 4) * 1024}")
    for i in range(1, 8):
        g(f"s_mov_b32 s{S_XO[i]}, {(i >> 2) * 262144 + (i & 3) * 4096}")
    g(f"s_mul_i32 s{S_MW}, s{S_T}, {WREG}")
    g(f"s_add_u32 s{S_MW}, s{S_MW}, {WBASE}")
    g(f"s_add_u32 s{S_WLIM}, s{S_MW}, {4*WSLOT}")
    g(f"s_mov_b32 s{S_XS+3}, 0x20000")
    g(f"s_mov_b32 s{S_WS+3}, 0x20000")
    g(f"s_sub_u32 s{S_XS+2}, 16777216, s{S_B0}")
    g(f"s_sub_u32 s{S_WS+2}, 6291456, s{S_N0}")
    S_KX, S_KW, S_RX, S_RW = 97, 98, 99, 100
    if o.rot:
        if o.rotsel == "m": g(f"s_lshr_b32 s{S_KX}, s3, 1")
        elif o.rotsel == "xcd": g(f"s_mov_b32 s{S_KX}, s3")
        elif o.rotsel == "all": g(f"s_mov_b32 s{S_KX}, 1")
        g(f"s_mul_i32 s{S_KX}, s{S_KX}, {o.rot}")
        g(f"s_and_b32 s{S_KX}, s{S_KX}, 15")
        g(f"s_lshl_b32 s{S_KW}, s{S_KX}, 1")
        g(f"s_lshl_b32 s{S_RX}, s{S_KX}, 7")
        g(f"s_lshl_b32 s{S_RW}, s{S_KX}, 17")
        if o.rotonly == "x":
            g(f"s_mov_b32 s{S_RW}, 0"); g(f"s_mov_b32 s{S_KW}, 0")
        if o.rotonly == "w":
            g(f"s_mov_b32 s{S_RX}, 0"); g(f"s_mov_b32 s{S_KX}, 0")
        g(f"s_sub_u32 s{S_XS+2}, s{S_XS+2}, s{S_RX}")
        g(f"s_sub_u32 s{S_WS+2}, s{S_WS+2}, s{S_RW}")
        g(f"s_add_u32 s{S_RX}, s{S_RX}, s{S_B0}")
        g(f"s_add_u32 s{S_RW}, s{S_RW}, s{S_N0}")
    if o.xr:
        g(f"s_bfe_u32 s{S_RX}, s{S_B0}, {(o.xr << 16) | (19 + o.xrbit)}")
        g(f"s_lshl_b32 s{S_RW}, s{S_RX}, 1")
        g(f"s_mov_b32 s{S_KX}, 0")
        g(f"s_mov_b32 s{S_KW}, 0")
        g(f"s_mov_b32 s90, s{S_XS+2}")
        g(f"s_mov_b32 s91, s{S_WS+2}")
    if o.stamp: g("s_memtime s[84:85]")
    g("s_waitcnt lgkmcnt(0)")
    if o.stamp: g("s_memtime s[86:87]")
    g(f"s_add_u32 s{S_WS}, s6, s{S_RW if o.rot else S_N0}")
    g(f"s_addc_u32 s{S_WS+1}, s7, 0")
    g(f"s_add_u32 s{S_XS}, s4, s{S_RX if o.rot else S_B0}")
    g(f"s_addc_u32 s{S_XS+1}, s5, 0")
    def x_set():
        g(f"s_xor_b32 s{S_T+1}, s{S_KX}, s{S_RX}")
        g(f"s_lshl_b32 s{S_T+1}, s{S_T+1}, 7")
        g(f"s_add_u32 s{S_XS}, s4, s{S_T+1}")
        g(f"s_addc_u32 s{S_XS+1}, s5, 0")
        g(f"s_sub_u32 s{S_XS+2}, s90, s{S_T+1}")
        g(f"s_add_u32 s{S_KX}, s{S_KX}, 1")
    def w_set():
        g(f"s_xor_b32 s{S_T+1}, s{S_KW}, s{S_RW}")
        g(f"s_lshl_b32 s{S_T+1}, s{S_T+1}, 16")
        g(f"s_add_u32 s{S_WS}, s6, s{S_T+1}")
        g(f"s_addc_u32 s{S_WS+1}, s7, 0")
        g(f"s_sub_u32 s{S_WS+2}, s91, s{S_T+1}")
        g(f"s_add_u32 s{S_KW}, s{S_KW}, 1")
    if o.xr:
        g(f"s_mov_b64 s[4:5], s[{S_XS}:{S_XS+1}]")
        g(f"s_mov_b64 s[6:7], s[{S_WS}:{S_WS+1}]")
        w_set(); x_set()
    xs = f"s[{S_XS}:{S_XS+3}]"; ws = f"s[{S_WS}:{S_WS+3}]"
    def ld(v, srd, so, off, fl=""):
        offs = f" offset:{off}" if off else ""
        return f"buffer_load_dwordx4 v{v}, {srd}, {so} offen{offs}{fl} lds"
    def x_chunk(s0=0, s1=8):
        for i in range(s0, s1):
            c = (i & 3) * 8192 + (i >> 2) * 2048
            g(f"s_add_u32 m0, s{S_MX}, {c}" if c else f"s_mov_b32 m0, s{S_MX}")
            g("s_nop 0")
            g(ld(V_XD, xs, f"s{S_XO[i]}" if i else "0", 0, o.xfl))
        if s1 < 8: return
        if o.xr: x_set()
        else:
            g(f"s_add_u32 s{S_XS}, s{S_XS}, 128")
            g(f"s_addc_u32 s{S_XS+1}, s{S_XS+1}, 0")
            g(f"s_sub_u32 s{S_XS+2}, s{S_XS+2}, 128")
        if o.rot:
            g(f"s_add_u32 s{S_KX}, s{S_KX}, 1")
            g(f"s_cmp_eq_u32 s{S_KX}, 16")
            g(f"s_cselect_b32 s{S_T+1}, 2048, 0")
            g(f"s_sub_u32 s{S_XS}, s{S_XS}, s{S_T+1}")
            g(f"s_subb_u32 s{S_XS+1}, s{S_XS+1}, 0")
            g(f"s_add_u32 s{S_XS+2}, s{S_XS+2}, s{S_T+1}")
        g(f"s_xor_b32 s{S_MX}, s{S_MX}, {XSLOT}")
    def w_stage():
        for j in range(6):
            if j == 0: g(f"s_mov_b32 m0, s{S_MW}"); g("s_nop 0")
            if j == 4: g(f"s_add_u32 m0, s{S_MW}, 4096"); g("s_nop 0")
            g(ld(V_WD, ws, f"s{S_WO[j]}" if j else "0", (j % 4) * 1024, o.wfl))
        if o.xr: w_set()
        else:
            g(f"s_add_u32 s{S_WS}, s{S_WS}, 65536")
            g(f"s_addc_u32 s{S_WS+1}, s{S_WS+1}, 0")
            g(f"s_sub_u32 s{S_WS+2}, s{S_WS+2}, 65536")
        if o.rot:
            g(f"s_add_u32 s{S_KW}, s{S_KW}, 1")
            g(f"s_cmp_eq_u32 s{S_KW}, 32")
            g(f"s_cselect_b32 s{S_T+1}, 2097152, 0")
            g(f"s_sub_u32 s{S_WS}, s{S_WS}, s{S_T+1}")
            g(f"s_subb_u32 s{S_WS+1}, s{S_WS+1}, 0")
            g(f"s_add_u32 s{S_WS+2}, s{S_WS+2}, s{S_T+1}")
        g(f"s_add_u32 s{S_MW}, s{S_MW}, {WSLOT}")
        g(f"s_cmp_eq_u32 s{S_MW}, s{S_WLIM}")
        g(f"s_cselect_b32 s{S_T+1}, {4*WSLOT}, 0")
        g(f"s_sub_u32 s{S_MW}, s{S_MW}, s{S_T+1}")
    def lstamp(k):
        if o.stamp > 1:
            g("s_memrealtime s[80:81]")
            g("s_memtime s[82:83]")
            g(f"s_add_u32 m0, s{S_CNT}, {k}")
            g("s_waitcnt lgkmcnt(0)")
            g("v_writelane_b32 v30, s80, m0")
            g("v_writelane_b32 v31, s82, m0")
    n0 = len(g.lines)
    def otouch():
        if o.ctouch == 1:
            g(f"global_load_dword v4, v{V_TX}, s[94:95]")
        if o.otouch:
            g(f"buffer_load_dword v4, v{V_TX}, s[{S_OS}:{S_OS+3}], 0 offen{o.tfl}")
            g(f"v_{'subrev' if o.odelay else 'add'}_u32 v{V_TX}, {o.otouch * 2048}, v{V_TX}")
    if o.xfirst:
        x_chunk(0, 3); w_stage(); x_chunk(3, 8)
    else:
        w_stage(); x_chunk()
    w_stage(); w_stage(); x_chunk(); w_stage()
    if o.otouch:
        g(f"s_lshl_b32 s{S_T+1}, s{S_T}, 17")
        g(f"s_add_u32 s{S_T+1}, s{S_T+1}, s{S_B0}")
        g(f"s_add_u32 s{S_T+1}, s{S_T+1}, s{S_N0}")
        g(f"s_add_u32 s{S_OS}, s52, s{S_T+1}")
        g(f"s_addc_u32 s{S_OS+1}, s53, 0")
        g(f"s_mov_b32 s{S_OS+2}, {63 * 2048 + 256}")
        g(f"s_mov_b32 s{S_OS+3}, 0x20000")
        g(f"v_lshrrev_b32 v{V_T}, 1, v0")
        g(f"v_and_b32 v{V_T+1}, 1, v0")
        g(f"v_lshlrev_b32 v{V_T+1}, 7, v{V_T+1}")
        g(f"v_lshl_add_u32 v{V_TX}, v{V_T}, 11, v{V_T+1}")
        g(f"v_cmp_gt_u32 vcc, {2 * o.otouch}, v0")
        g(f"v_mov_b32 v{V_T+1}, 0x7f000000")
        g("s_nop 0")
        g(f"v_cndmask_b32 v{V_TX}, v{V_T+1}, v{V_TX}, vcc")
        if o.odelay: g(f"v_add_u32 v{V_TX}, {14 * o.otouch * 2048}, v{V_TX}")
    if o.ctouch:
        g(f"s_mul_i32 s{S_T+1}, s{S_T}, 3072")
        g(f"s_add_u32 s{S_T+1}, s{S_T+1}, L_tail-L_pc")
        g(f"v_min_u32 v{V_T}, 23, v0")
        g(f"v_lshl_add_u32 v{V_TX}, v{V_T}, 7, s{S_T+1}")
        g(f"v_min_u32 v{V_TX}, L_end-L_pc, v{V_TX}")
    otouch()
    w_stage()
    nt = 1 if (o.otouch or o.ctouch == 1) else 0
    seg = g.lines[n0:]; del g.lines[n0:]
    marks = {o.i0: 9, o.i1: 11, o.i2: 14}
    k = 0
    for ln in seg:
        g.lines.append(ln)
        if "lds" in ln and "buffer_load" in ln:
            k += 1
            for mk in sorted(set([o.i0, o.i1, o.i2])):
                pass
            for bi, (at, need) in enumerate(((o.i0, 9), (o.i1, 11), (o.i2, 14), (o.i3, 20))):
                if k == at:
                    if o.stamp and bi == 0: g("s_memtime s[88:89]")
                    g(f"s_waitcnt vmcnt({k - need})")
                    if o.stamp and bi == 0: g("s_memtime s[76:77]")
                    if o.stamp and bi == 2: g("s_memtime s[92:93]")
                    g("s_barrier")
    g(f"s_mov_b32 s{S_CNT}, 0")
    seg_first = [0, o.h1, o.h1 + o.h2]
    def warm_entry(seg):
        g("s_mov_b64 exec, 0")
        for w in range(3):
            g(f"s_cmp_eq_u32 s{S_T}, {w}")
            g(f"s_cbranch_scc1 L_pad{4 * seg_first[seg] + w}")
        g(f"s_branch L_pad{4 * seg_first[seg] + 3}")
    g.label("L_ld_loop")
    if o.bal:
        g("s_waitcnt vmcnt(12)")
        g("s_barrier")
        x_chunk()
        lstamp(0)
        g(f"s_add_u32 s{S_CNT}, s{S_CNT}, 2")
        g(f"s_cmp_ge_u32 s{S_CNT}, 28")
        g("s_cbranch_scc1 L_ld_last")
        g("s_waitcnt vmcnt(14)")
        g("s_barrier")
        w_stage(); w_stage()
        if o.ctouch == 2:
            g(f"s_cmp_lg_u32 s{S_CNT}, {o.cwhen}")
            g("s_cbranch_scc1 L_noct")
            g(f"global_load_dword v4, v{V_TX}, s[94:95]")
            g.label("L_noct")
        lstamp(-1)
        g("s_branch L_ld_loop")
        g.label("L_ld_last")
        w_stage()
        g(f"s_waitcnt vmcnt({14 if o.early30 else 20})")
        g("s_barrier")
    else:
        g(f"s_waitcnt vmcnt({12 + nt})")
        g("s_barrier")
        x_chunk(); w_stage(); otouch()
        if o.ctouch == 2:
            g(f"s_cmp_lg_u32 s{S_CNT}, {o.cwhen}")
            g("s_cbranch_scc1 L_noct")
            g(f"global_load_dword v4, v{V_TX}, s[94:95]")
            g.label("L_noct")
        if o.warm:
            g(f"s_cmp_lg_u32 s{S_CNT}, 26")
            g("s_cbranch_scc1 L_back1")
            warm_entry(0)
            g.label("L_back1")
            g("s_mov_b64 exec, -1")
        lstamp(0)
        g(f"s_add_u32 s{S_CNT}, s{S_CNT}, 2")
        g(f"s_waitcnt vmcnt({20 + 2 * nt})")
        g("s_barrier")
        g(f"s_cmp_ge_u32 s{S_CNT}, 28")
        g("s_cbranch_scc1 L_ld_done")
        w_stage()
        lstamp(-1)
        g("s_branch L_ld_loop")
    g.label("L_ld_done")
    if o.warm:
        warm_entry(1)
        g.label("L_back2")
        g("s_mov_b64 exec, -1")
    g("s_waitcnt vmcnt(0)")
    g("s_barrier")
    lstamp(1)
    if o.stamp:
        g(f"s_lshl_b32 s{S_T+1}, s2, 2")
        g(f"s_add_u32 s{S_T+1}, s{S_T+1}, s{S_T}")
        g(f"s_lshl_b32 s{S_T+1}, s{S_T+1}, 8")
        g(f"s_add_u32 s{S_T+1}, s{S_T+1}, 65536")
        g(f"s_mov_b32 s{S_PS}, s54")
        g(f"s_mov_b32 s{S_PS+1}, s55")
        g(f"s_mov_b32 s{S_PS+2}, 0x100000")
        g(f"s_mov_b32 s{S_PS+3}, 0x20000")
        g(f"v_lshlrev_b32 v29, 2, v0")
        g("s_mov_b64 exec, 0xffffffff")
        g(f"buffer_store_dword v30, v29, s[{S_PS}:{S_PS+3}], s{S_T+1} offen")
        g(f"buffer_store_dword v31, v29, s[{S_PS}:{S_PS+3}], s{S_T+1} offen offset:128")
        for i, r in enumerate((84, 86, 88, 76, 92)):
            g(f"s_sub_u32 s{r}, s{r}, s{S_STAMP}")
            g(f"v_writelane_b32 v32, s{r}, {i}")
        g(f"s_add_u32 s{S_T+1}, s{S_T+1}, 262144")
        g("s_mov_b64 exec, -1")
        g(f"buffer_store_dword v32, v29, s[{S_PS}:{S_PS+3}], s{S_T+1} offen")
    if o.warm:
        warm_entry(2)
    g("s_endpgm")

    g.label("L_consumer")
    g(f"s_mov_b32 s{S_PS+2}, 2048")
    g(f"s_mov_b32 s{S_PS+3}, 0x20000")
    g(f"s_mov_b32 s{S_OS+3}, 0x20000")
    g(f"v_lshrrev_b32 v{V_T+2}, 4, v0")
    g(f"s_lshl_b32 s{S_T+1}, s{S_T}, 6")
    g(f"s_add_u32 s{S_T+1}, s{S_T+1}, s{S_N0}")
    if o.bnlane:
        g(f"v_lshl_add_u32 v{V_T}, v{V_T+2}, 3, s{S_T+1}")
        g(f"v_bfe_u32 v{V_T+1}, v0, 2, 1")
        g(f"v_lshl_add_u32 v{V_T}, v{V_T+1}, 5, v{V_T}")
        g(f"v_and_b32 v{V_T+1}, 3, v0")
        g(f"v_lshl_add_u32 v{V_T}, v{V_T+1}, 1, v{V_T}")
        g("s_waitcnt lgkmcnt(0)")
        V_RAW = 32; nraw = 4
        bn_ld = []
        for pi in range(4):
            bn_ld.append([f"s_mov_b32 s{S_PS}, s{44+2*pi}", f"s_mov_b32 s{S_PS+1}, s{45+2*pi}",
                          f"buffer_load_ushort v{V_RAW+pi}, v{36 if o.bntail else V_T}, s[{S_PS}:{S_PS+3}], 0 offen"])
        if o.bntail:
            g(f"v_mov_b32 v36, v{V_T}")
        else:
            for l_ in bn_ld:
                for t_ in l_: g(t_)
    else:
        g(f"v_lshl_add_u32 v{V_T}, v{V_T+2}, 3, s{S_T+1}")
        g("s_waitcnt lgkmcnt(0)")
        if o.ptouch:
            g(f"s_add_u32 s{S_OS}, s4, s{S_B0}")
            g(f"s_addc_u32 s{S_OS+1}, s5, 0")
            g(f"s_mov_b32 s{S_OS+2}, 524288")
            g(f"s_lshl_b32 s{S_T+1}, s{S_T}, {o.ptouch}")
            g(f"v_lshlrev_b32 v{V_T+1}, {o.ptouch + 2}, v0")
            g(f"buffer_load_dword v5, v{V_T+1}, s[{S_OS}:{S_OS+3}], s{S_T+1} offen")
        V_RAW = 32
        nraw = 4
        for pi in range(4):
            g(f"s_mov_b32 s{S_PS}, s{44+2*pi}")
            g(f"s_mov_b32 s{S_PS+1}, s{45+2*pi}")
            for d in range(2):
                g(f"buffer_load_dwordx2 {vr(V_RAW+pi*nraw+2*d,2)}, v{V_T}, s[{S_PS}:{S_PS+3}], 0 offen offset:{32*d}")
    g(f"v_and_b32 v{V_T}, 15, v0")
    g(f"v_lshrrev_b32 v{V_T+1}, 1, v{V_T}")
    g(f"v_xor_b32 v{V_T+1}, v{V_T+1}, v{V_T+2}")
    g(f"v_lshlrev_b32 v{V_T+1}, 4, v{V_T+1}")
    g(f"v_lshl_add_u32 v{V_XA[0]}, v{V_T}, 7, v{V_T+1}")
    g(f"v_xor_b32 v{V_XA[1]}, 64, v{V_XA[0]}")
    g(f"v_lshlrev_b32 v{V_T}, 14, v{V_T}")
    g(f"v_bfe_u32 v{V_T+1}, v0, 4, 1")
    g(f"v_lshl_add_u32 v{V_T}, v{V_T+1}, 5, v{V_T}")
    g(f"v_lshrrev_b32 v{V_T+1}, 5, v0")
    g(f"v_lshl_add_u32 v{V_T}, v{V_T+1}, 4, v{V_T}")
    g(f"s_lshl_b32 s{S_T+1}, s{S_T}, 6")
    g(f"v_add_u32 v{V_OUT}, s{S_T+1}, v{V_T}")
    if o.fakeline:
        g(f"v_lshrrev_b32 v{V_T}, 3, v0")
        g(f"v_lshlrev_b32 v{V_T}, 11, v{V_T}")
        g(f"v_and_b32 v{V_T+1}, 7, v0")
        g(f"v_lshl_add_u32 v{V_T}, v{V_T+1}, 4, v{V_T}")
        g(f"s_and_b32 s{S_T+1}, s{S_T}, 1")
        g(f"s_lshl_b32 s{S_T+1}, s{S_T+1}, 7")
        g(f"s_lshr_b32 s{S_T+2}, s{S_T}, 1")
        g(f"s_lshl_b32 s{S_T+2}, s{S_T+2}, 14")
        g(f"s_add_u32 s{S_T+1}, s{S_T+1}, s{S_T+2}")
        g(f"v_add_u32 v{V_OUT}, s{S_T+1}, v{V_T}")
    g(f"v_bfe_u32 v{V_T}, v0, 2, 2")
    g(f"v_xor_b32 v{V_T+1}, s{S_T}, v{V_T}")
    g(f"v_lshlrev_b32 v{V_T+1}, 6, v{V_T+1}")
    g(f"v_lshl_add_u32 v{V_T+1}, v{V_T}, 8, v{V_T+1}")
    g(f"v_mul_u32_u24 v{V_T+3}, {WREG}, v{V_T+2}")
    g(f"v_add_u32 v{V_T+1}, v{V_T+1}, v{V_T+3}")
    g(f"v_and_b32 v{V_T+2}, 1, v{V_T+2}")
    g(f"v_lshl_add_u32 v{V_T+1}, v{V_T+2}, 5, v{V_T+1}")
    g(f"v_and_b32 v{V_T+2}, 3, v0")
    g(f"v_lshl_add_u32 v{V_T+1}, v{V_T+2}, 3, v{V_T+1}")
    g(f"v_add_u32 v{V_WA[0]}, {WBASE}, v{V_T+1}")
    g(f"v_xor_b32 v{V_WA[1]}, 32, v{V_WA[0]}")
    g(f"s_add_u32 s{S_T+1}, s{S_B0}, s{S_N0}")
    g(f"s_add_u32 s{S_OS}, s52, s{S_T+1}")
    g(f"s_addc_u32 s{S_OS+1}, s53, 0")
    g(f"s_sub_u32 s{S_OS+2}, 16777216, s{S_T+1}")
    g(f"s_mov_b32 s{S_K}, 0xbfb8aa3b")
    g(f"s_mov_b32 s{S_K+1}, 0xbfb8aa3b")
    for i in range(0, 128, 2):
        g(f"v_mov_b64 v[{V_ACC+i}:{V_ACC+i+1}], 0")
    bn_ops = []
    def gb(x): bn_ops.append(x)
    gb("s_waitcnt vmcnt(0)")
    M_, V_, G_, B_ = (V_RAW + i * nraw for i in range(4))
    TA, TB = V_T, V_T + 1
    gb(f"s_mov_b32 s{S_T+1}, 0x3727c5ac")
    def unpack(dst, src, hi):
        if hi: gb(f"v_and_b32 v{dst}, 0xffff0000, v{src}")
        else:  gb(f"v_lshlrev_b32 v{dst}, 16, v{src}")
    for k in range(nraw):
        lo, hi = V_SC + 2 * k, V_SC + 2 * k + 1
        unpack(lo, V_ + k, 0); unpack(hi, V_ + k, 1)
        gb(f"v_add_f32 v{lo}, s{S_T+1}, v{lo}")
        gb(f"v_add_f32 v{hi}, s{S_T+1}, v{hi}")
        gb(f"v_cvt_pk_bf16_f32 v{TA}, v{lo}, v{hi}")
        unpack(lo, TA, 0); unpack(hi, TA, 1)
        gb(f"v_sqrt_f32 v{lo}, v{lo}")
        gb(f"v_sqrt_f32 v{hi}, v{hi}")
        gb(f"v_cvt_pk_bf16_f32 v{TA}, v{lo}, v{hi}")
        unpack(lo, TA, 0); unpack(hi, TA, 1)
        gb(f"v_rcp_f32 v{lo}, v{lo}")
        gb(f"v_rcp_f32 v{hi}, v{hi}")
        gb(f"v_cvt_pk_bf16_f32 v{TA}, v{lo}, v{hi}")
        unpack(lo, TA, 0); unpack(hi, TA, 1)
        unpack(TA, G_ + k, 0); unpack(TB, G_ + k, 1)
        gb(f"v_mul_f32 v{lo}, v{lo}, v{TA}")
        gb(f"v_mul_f32 v{hi}, v{hi}, v{TB}")
        gb(f"v_cvt_pk_bf16_f32 v{TA}, v{lo}, v{hi}")
        unpack(lo, TA, 0); unpack(hi, TA, 1)
        slo, shi = V_SH + 2 * k, V_SH + 2 * k + 1
        unpack(slo, B_ + k, 0); unpack(shi, B_ + k, 1)
        unpack(TA, M_ + k, 0); unpack(TB, M_ + k, 1)
        gb(f"v_fma_f32 v{slo}, -v{TA}, v{lo}, v{slo}")
        gb(f"v_fma_f32 v{shi}, -v{TB}, v{hi}, v{shi}")
        for r in (lo, hi, slo, shi):
            gb(f"v_mul_f32 v{r}, s{S_K}, v{r}")

    if o.bnlane:
        bn_ops = ["s_waitcnt vmcnt(0)", f"s_mov_b32 s{S_T+1}, 0x3727c5ac"]
        m_, v_, g_, b_ = 32, 33, 34, 35
        for r in (v_, g_, m_, b_): bn_ops.append(f"v_lshlrev_b32 v{r}, 16, v{r}")
        rnd = [f"v_cvt_pk_bf16_f32 v{v_}, v{v_}, v{v_}", f"v_and_b32 v{v_}, 0xffff0000, v{v_}"]
        bn_ops += [f"v_add_f32 v{v_}, s{S_T+1}, v{v_}"] + rnd + [f"v_sqrt_f32 v{v_}, v{v_}"] + rnd + [f"v_rcp_f32 v{v_}, v{v_}"] + rnd
        bn_ops += [f"v_mul_f32 v{v_}, v{v_}, v{g_}"] + rnd + [f"v_fma_f32 v{b_}, -v{m_}, v{v_}, v{b_}",
                   f"v_mul_f32 v{v_}, s{S_K}, v{v_}", f"v_mul_f32 v{b_}, s{S_K}, v{b_}", "s_nop 1"]
        for k in range(8):
            bn_ops.append(f"v_mov_b32_dpp v{V_SC+k}, v{v_} row_newbcast:{k} row_mask:0xf bank_mask:0xf")
        for k in range(8):
            bn_ops.append(f"v_mov_b32_dpp v{V_SH+k}, v{b_} row_newbcast:{k} row_mask:0xf bank_mask:0xf")
    def xread(p, f, slot):
        s, q = f & 7, f >> 3
        return f"ds_read_b128 {vr(V_XB + slot * 4,4)}, v{V_XA[p]} offset:{s * 4096 + q * 2048}"
    def wread(p, t, d, h, slot=None):
        dst = wfrag(p, t, d) + 2 * h
        slot = p if slot is None else slot
        return f"ds_read_b64_tr_b16 {vr(dst,2)}, v{V_WA[d]} offset:{slot * WSLOT + t*2048 + h*1024}"
    def mf(sp, q, d, p, t, slot, xtag, wst):
        a = acc(sp, q, d)
        return ("m", f"v_mfma_f32_16x16x32_bf16 {vr(a,4)}, {vr(wfrag(p,t,d),4)}, {vr(V_XB + slot * 4,4)}, {vr(a,4)}",
                [xtag, ("w", t, d, 0, wst), ("w", t, d, 1, wst)], (sp, q))
    def out_group(p, gam, st):
        sp, q = gam & 7, gam >> 3
        out = []
        ds = (0, 1) if (not o.snake or sp % 2 == 0) else (1, 0)
        for di, d in enumerate(ds):
            for t in ((0, 1, 2) if (not o.snake or di == 0) else (2, 1, 0)):
                s_ = sp + t - 1
                if 0 <= s_ <= 7:
                    f = q * 8 + s_
                    out.append(mf(sp, q, d, p, t, f % NXB, ("x", f, st), st))
        return out
    worder = [(t, d, h) for (t, d) in ((1, 0), (2, 0), (1, 1), (2, 1), (0, 0), (0, 1)) for h in range(2)]

    def stage_stream(p, st, first=False):
        items = []
        groups = [out_group(p, f, st) for f in range(16)]
        nm = sum(len(x) for x in groups)
        fill = [[] for _ in range(nm)]
        start = [sum(len(x) for x in groups[:f]) for f in range(17)]
        fb = 16 - L
        for f in range(16):
            if f + L < 16:
                fill[start[f]].append(("l", xread(p, f + L, (f + L) % NXB), ("x", f + L, st)))
        ib = start[fb + 1] - 1
        taken = set()
        if o.bgap:
            fill[ib - o.bgap].append(("wait0",))
            fill[ib].append(("bar_nowait",))
            fill[ib + 1].append(("l", xread(1 - p, 0, 0), ("x", 0, st + 1)))
        else:
            fill[ib].append(("bar",))
            fill[ib].append(("l", xread(1 - p, 0, 0), ("x", 0, st + 1)))
        for f in range(fb + 1, 16):
            i_ = start[f] + (1 if (o.bgap and f == fb + 1) else 0)
            fill[i_].append(("l", xread(1 - p, f + L - 16, (f + L - 16) % NXB), ("x", f + L - 16, st + 1)))
            taken.add(start[f]); taken.add(i_)
        free = [i for i in range(ib + 1, nm) if i not in taken]
        for k, w_ in enumerate(worder):
            fill[free[k]].append(("l", wread(1 - p, *w_), ("w",) + w_ + (st + 1,)))
        fill[start[15 - L] + 1].append(("i", f"v_xor_b32 v{V_XA[p]}, {XSLOT}, v{V_XA[p]}"))
        if p == 1:
            fill[1].append(("i", f"v_add_u32 v{V_WA[0]}, s{S_DELTA}, v{V_WA[0]}"))
            fill[2].append(("i", f"v_add_u32 v{V_WA[1]}, s{S_DELTA}, v{V_WA[1]}"))
            fill[3].append(("i", f"s_sub_u32 s{S_DELTA}, 0, s{S_DELTA}"))
        elif first:
            fill[start[10 - L]].insert(0, ("bar_nowait",))
            ops = list(bn_ops) if not (o.bnpro or o.bntail) else []; i = o.bn0
            if o.bntail:
                for j, l_ in enumerate(bn_ld):
                    for t_ in l_: fill[o.bn0 + 6 * j].append(("i", t_))
            while ops:
                budget = 2 - sum(1 for it in fill[i] if it[0] == "i")
                while ops and budget > 0:
                    c = 2 if ops[0].startswith(("v_sqrt", "v_rcp")) else (0 if ops[0].startswith("s_") else 1)
                    if c > budget and budget < 2: break
                    fill[i].append(("i", ops.pop(0))); budget -= c
                i += 1
        else:
            fill[nm - 3].append(("i", f"s_add_u32 s{S_CNT}, s{S_CNT}, 2"))
            fill[nm - 2].append(("i", f"s_cmp_lt_u32 s{S_CNT}, 28"))
        i = 0
        for f in range(16):
            for m in groups[f]:
                items.append(m)
                items += fill[i]
                i += 1
        return items

    class Q:
        def __init__(self): self.seq = []; self.done = -1
        def run(self, items, first=False):
            cur = []
            for item in items:
                if item[0] == "m":
                    need = -1
                    for key in item[2]:
                        idx = [i for i, t_ in enumerate(self.seq) if t_ == key]
                        if idx: need = max(need, idx[-1])
                        else: assert first, key
                    if need > self.done:
                        cnt = min(len(self.seq) - 1 - need, 15)
                        cur.append(f"s_waitcnt lgkmcnt({cnt})")
                        self.done = len(self.seq) - 1 - cnt
                    cur.append(item[1])
                elif item[0] == "l":
                    self.seq.append(item[2]); cur.append(item[1])
                elif item[0] == "bar":
                    cur.append("s_waitcnt lgkmcnt(0)"); cur.append("s_barrier")
                    self.done = len(self.seq) - 1
                elif item[0] == "wait0":
                    cur.append("s_waitcnt lgkmcnt(0)")
                    self.done = len(self.seq) - 1
                elif item[0] == "bar_nowait":
                    cur.append("s_barrier")
                else:
                    cur.append(item[1])
            return cur
    q = Q()
    init = [("l", wread(0, *w_), ("w",) + w_ + (0,)) for w_ in worder[:4]] + \
           [("l", xread(0, f, f), ("x", f, 0)) for f in range(2)] + \
           [("l", wread(0, *w_), ("w",) + w_ + (0,)) for w_ in worder[4:]] + \
           [("l", xread(0, f, f), ("x", f, 0)) for f in range(2, L)]
    if o.cw0:
        q.run(init)
        st0_ = stage_stream(0, 0, first=True)
        k_ = next(i for i, it in enumerate(st0_) if it[0] == "l")
        rd = st0_.pop(k_)
        k2 = [i for i, it in enumerate(st0_) if it[0] == "m"][o.cw0]
        st0_[k2:k2] = [("bar_nowait",), rd]
        stage0 = q.run(st0_)
    else:
        stage0 = q.run(stage_stream(0, 0, first=True), first=True)
    body = q.run(stage_stream(1, 1)) + q.run(stage_stream(0, 2))
    body2 = q.run(stage_stream(1, 3)) + q.run(stage_stream(0, 4))
    assert body == body2

    def unit_ops(sp, bg, ui, pk, E=None, fl=None):
        A = [acc(sp, bg, d) + j for d in range(2) for j in range(4)]
        E = V_E[ui % 2] if E is None else E
        fl = o.stflags if fl is None else fl
        so = S_SO + ui % 4
        ops = []
        if pk:
            for i in range(0, 8, 2):
                ops.append((f"v_pk_fma_f32 {vr(A[i],2)}, {vr(A[i],2)}, {vr(V_SC+i,2)}, {vr(V_SH+i,2)}", 1))
        else:
            for i in range(8): ops.append((f"v_fma_f32 v{A[i]}, v{A[i]}, v{V_SC+i}, v{V_SH+i}", 1))
        for i in range(8): ops.append((f"v_exp_f32 v{E+i}, v{A[i]}", 2))
        if pk:
            for i in range(0, 8, 2):
                ops.append((f"v_pk_fma_f32 {vr(E+i,2)}, {vr(E+i,2)}, s[{S_K}:{S_K+1}], s[{S_K}:{S_K+1}]", 1))
        else:
            for i in range(8): ops.append((f"v_fma_f32 v{E+i}, v{E+i}, s{S_K}, s{S_K}", 1))
        for i in range(8): ops.append((f"v_rcp_f32 v{E+i}, v{E+i}", 2))
        if pk:
            for i in range(0, 8, 2):
                ops.append((f"v_pk_mul_f32 {vr(A[i],2)}, {vr(A[i],2)}, {vr(E+i,2)}", 1))
        else:
            for i in range(8): ops.append((f"v_mul_f32 v{A[i]}, v{A[i]}, v{E+i}", 1))
        P = A[0]
        for i in range(4): ops.append((f"v_cvt_pk_bf16_f32 v{P+i}, v{A[2*i]}, v{A[2*i+1]}", 1))
        ops.append((f"s_mov_b32 s{so}, {(bg * 128 + sp) * 2048 if not o.fakeline else (sp * 2 + bg) * 32768}", 0))
        ops.append((f"v_permlane16_swap_b32 v{P}, v{P+2}", 1))
        ops.append((f"v_permlane16_swap_b32 v{P+1}, v{P+3}", 1))
        ops.append((f"buffer_store_dwordx4 {vr(P,4)}, v{V_OUT}, s[{S_OS}:{S_OS+3}], s{so} offen{fl}", 1))
        return ops

    tail = []
    pend = []
    if True:
        st0 = 5
        NT, LT = 6, 5
        wset = [1, 0, 2]; xpar = [1, 0, 1]
        order = {0: [((0,), 0), ((0,), 1), ((0,), 2), ((0,), 3), ((0,), 4), ((1, 2), 0), ((1, 2), 1), ((0,), 5),
                     ((1, 2), 2), ((1, 2), 3), ((1, 2), 4), ((1, 2), 5)],
                 1: [((0,), 0), ((0,), 1), ((0,), 2), ((0,), 3), ((1,), 0), ((1,), 1), ((0,), 4), ((2,), 0), ((2,), 1), ((0,), 5),
                     ((1, 2), 2), ((1, 2), 3), ((1, 2), 4), ((1, 2), 5)],
                 2: [((0,), f) for f in range(6)] + [((1, 2), f) for f in range(6)]}[o.tord]
        order += [((0, 1, 2), f) for f in range(6, 16)]
        assert L == 6 and sum(len(ks) for ks, f in order) == 48
        slot = {}
        for f in range(6): slot[(0, f)] = f
        freeat = {}
        for i, (ks, f) in enumerate(order):
            if 0 in ks and f < 6: freeat[f] = i
        reads = []
        for i, (ks, f) in enumerate(order):
            for k in ks:
                if k == 0 and f < 6: continue
                sl = min(freeat, key=lambda z: freeat[z])
                assert freeat[sl] < i
                reads.append((freeat[sl] + 1, (k, f), sl))
                slot[(k, f)] = sl; freeat[sl] = i
        def pos_group(ks, f):
            s_, q = f & 7, f >> 3
            out = []
            for t in (2, 1, 0):
                sp = s_ - t + 1
                if not 0 <= sp <= 7: continue
                for d in range(2):
                    for k in ks:
                        out.append(mf(sp, q, d, wset[k], t, slot[(k, f)], ("x", f, st0 + k), st0 + k))
            return out
        groups = [pos_group(ks, f) for (ks, f) in order]
        nm = sum(len(x) for x in groups)
        start = [sum(len(x) for x in groups[:i]) for i in range(len(order) + 1)]
        fill = [[] for _ in range(nm)]
        fill[0].append(("i", f"v_xor_b32 v{V_XA2}, {XSLOT}, v{V_XA[1]}"))
        fill[0].append(("i", f"v_add_u32 v{V_WA[0]}, s{S_DELTA}, v{V_WA[0]}"))
        fill[1].append(("i", f"v_add_u32 v{V_WA[1]}, s{S_DELTA}, v{V_WA[1]}"))
        fill[o.tbar].append(("bar_nowait",))
        if o.stamp:
            fill[o.tbar].append(("i", "s_memtime s[84:85]"))
            fill[nm - 1].append(("i", "s_memtime s[86:87]"))
        for (gi, (k, f), sl) in reads:
            txt = xread(xpar[k], f, sl)
            if k == 2: txt = txt.replace(f"v{V_XA[1]} ", f"v{V_XA2} ")
            i_ = max(start[gi], o.tbar + 1)
            while any(it[0] == "l" for it in fill[i_]): i_ += 1
            fill[i_].append(("l", txt, ("x", f, st0 + k)))
        free = [i for i in range(o.tbar + 1, nm) if not fill[i]]
        free0 = [i for i in range(2, nm) if not fill[i]]
        tw = [(t, d, h) for (t, d) in ((1, 0), (1, 1), (0, 0), (0, 1), (2, 0), (2, 1)) for h in range(2)]
        l1 = [("l", wread(0, *w_, slot=0), ("w",) + w_ + (st0 + 1,)) for w_ in tw]
        l2 = [("l", wread(2, *w_, slot=1), ("w",) + w_ + (st0 + 2,)) for w_ in tw]
        if o.tord == 0:
            wl = [x_ for j in range(0, 12, 2) for x_ in l1[j:j+2] + l2[j:j+2]]
        else:
            wl = l1 + l2
        if o.early30:
            for k, it in enumerate(l1): fill[free0[k]].append(it)
            free = [i for i in free if not fill[i]]
            wl = l2
        for k, it in enumerate(wl):
            fill[free[k]].append(it)
        if o.bntail:
            ops = list(bn_ops); i = 3
            while ops:
                c = 0
                while ops and c < 1:
                    t_ = ops.pop(0); fill[i].append(("i", t_)); c += 0 if t_.startswith("s_") else 1
                i += 1
        flat = [m for gr in groups for m in gr]
        last = {}
        for i, m in enumerate(flat): last[m[3]] = i
        units = sorted(last, key=lambda u: last[u])
        ui = 0; ops = []; ready = 0
        queue = []
        nstart = 0
        for i in range(nm):
            budget = o.budget - sum(1 for it in fill[i] if it[0] == "l") * o.ldscost
            while budget > 0:
                if not queue:
                    if nstart < len(units) and last[units[nstart]] + o.gap <= i:
                        queue = unit_ops(*units[nstart], nstart, False); nstart += 1
                    else: break
                txt, c = queue[0]
                if c > budget and budget < o.budget: break
                fill[i].append(("i", txt)); queue.pop(0); budget -= c
        items = []
        for i, m in enumerate(flat):
            items.append(m); items += fill[i]
        tail = q.run(items)
        pend = [t for t, c in queue]
        rest_units = units[nstart:]
        ubase = nstart

    if o.bnpro and not o.bntail:
        for s_ in hz.pad(bn_ops)[0]: g(s_)
    g("s_barrier")
    if o.stamp:
        g(f"s_memtime s[{S_STAMP+4}:{S_STAMP+5}]")
        g(f"s_memrealtime s[{S_STAMP+14}:{S_STAMP+15}]")
        g("s_waitcnt lgkmcnt(0)")
    for w_ in worder[:4]: g(wread(0, *w_))
    for f in range(2): g(xread(0, f, f))
    for w_ in worder[4:]: g(wread(0, *w_))
    for f in range(2, L): g(xread(0, f, f))
    g(f"s_mov_b32 s{S_DELTA}, {2*WSLOT}")
    g(f"s_mov_b32 s{S_CNT}, 0")
    if o.prio: g(f"s_setprio {o.prio}")
    if not o.cw0:
        g("s_waitcnt lgkmcnt(0)")
        g("s_barrier")
    stage0p, n_ins0 = hz.pad(stage0)
    sys.stderr.write(f"stage0: {n_ins0} nops inserted\n")
    if o.stamp: g("s_memtime s[88:89]")
    for s_ in stage0p: g(s_)
    if o.stamp: g("s_memtime s[90:91]")
    g.raw(".p2align 6")
    g.label("L_loop")
    for s_ in body: g(s_)
    g("s_cbranch_scc1 L_loop")
    g.label("L_tail")
    if o.dummy:
        for i in range(32, 48): g(f"v_mov_b32 v{i}, 0")
        g(f"s_mov_b32 s{S_T+2}, 0")
        g.label("L_dummy")
        for i in range(88):
            a = 32 + (i % 4) * 4
            g(f"v_mfma_f32_16x16x32_bf16 v[{a}:{a+3}], {vr(V_WB[1] + (i % 6) * 4, 4)}, {vr(V_XB + ((i // 6) % 6) * 4, 4)}, v[{a}:{a+3}]")
        g(f"s_add_u32 s{S_T+2}, s{S_T+2}, 1")
        g(f"s_cmp_lt_u32 s{S_T+2}, {o.dummy}")
        g("s_cbranch_scc1 L_dummy")
        g("s_nop 15")
    if o.stamp:
        g(f"s_memtime s[{S_STAMP+6}:{S_STAMP+7}]")
        g(f"s_memrealtime s[{S_STAMP+16}:{S_STAMP+17}]")
    fin = list(tail) + list(pend)
    lists = []
    for j, (sp, bg) in enumerate(rest_units):
        fl = "" if len(rest_units) - j <= o.lastplain else None
        lists.append([txt for txt, c in unit_ops(sp, bg, ubase + j, o.pk, E=(V_WB[0] + (j % 2) * 8 if o.swp else None), fl=fl)])
    if not o.swp:
        for l_ in lists: fin += l_
    else:
        def ph(l_):
            n = 4 if o.pk else 8
            return l_[:n], l_[n:n+8], l_[n+8:2*n+8], l_[2*n+8:2*n+16], l_[2*n+16:3*n+16], l_[3*n+16:]
        def weave(a, b):
            out = []; a = list(a); b = list(b)
            while a or b:
                if a: out.append(a.pop(0))
                if b: out.append(b.pop(0))
            return out
        P = [ph(l_) for l_ in lists]
        fin += P[0][0] + P[0][1]
        for j in range(len(P)):
            A, X, B, R, M, C = P[j]
            nA, nX = (P[j+1][0], P[j+1][1]) if j + 1 < len(P) else ([], [])
            pC = P[j-1][5] if j > 0 else []
            fin += B + weave(R, pC) + nA + M + nX
        fin += P[-1][5]
    padded, n_ins = hz.pad(body[-24:] + fin)
    assert padded[:24] == body[-24:]
    sys.stderr.write(f"tail: {ubase} units started under MFMA, {len(pend)} pending ops, {n_ins} nops inserted\n")
    lines = padded[24:]
    if o.warm:
        def size(t):
            op = t.split(" ")[0]
            if op in ("s_waitcnt", "s_barrier", "s_nop", "v_exp_f32", "v_rcp_f32", "v_mul_f32", "v_permlane16_swap_b32", "v_add_u32"): return 4
            if op == "s_mov_b32": return 4 if t.endswith(", 0") else 8
            return 8
        total = sum(size(t) for t in lines)
        npad = total // o.warm + 1
        npad = (npad + 3) // 4 * 4
        out_ = []; acc_ = 0; k = 0
        for t in lines:
            if acc_ >= k * total / npad and k < npad:
                hop = k // 4
                if hop == o.h1 - 1: tgt = "L_back1"
                elif hop == o.h1 + o.h2 - 1: tgt = "L_back2"
                elif k + 4 >= npad: tgt = "L_end"
                else: tgt = f"L_pad{k + 4}"
                out_.append(f"L_pad{k}:"); out_.append(f"s_cbranch_execz {tgt}")
                k += 1
            out_.append(t); acc_ += size(t)
        assert k == npad, (k, npad)
        sys.stderr.write(f"warm pads: {npad}\n")
        lines = out_
    for s_ in lines:
        if s_.endswith(":"): g.label(s_[:-1])
        else: g(s_)
    if o.stamp:
        g(f"s_memtime s[{S_STAMP+8}:{S_STAMP+9}]")
        g("s_waitcnt vmcnt(0)")
        g(f"s_memtime s[{S_STAMP+10}:{S_STAMP+11}]")
        g(f"s_memrealtime s[{S_STAMP+12}:{S_STAMP+13}]")
        g("s_waitcnt lgkmcnt(0)")
        g(f"s_lshl_b32 s{S_T+1}, s2, 2")
        g(f"s_add_u32 s{S_T+1}, s{S_T+1}, s{S_T}")
        g(f"s_lshl_b32 s{S_T+1}, s{S_T+1}, 6")
        g(f"s_mov_b32 s{S_PS}, s54")
        g(f"s_mov_b32 s{S_PS+1}, s55")
        g(f"s_mov_b32 s{S_PS+2}, 0x100000")
        g(f"v_mov_b32 v{V_T}, s{S_T+1}")
        S = S_STAMP
        for i, r in enumerate([S, S+2, S+4, S+14, S+6, S+16, 84, 86, S+8, S+10, S+12, 88, 90]):
            g(f"v_mov_b32 v{V_WB[0]+i}, s{r}")
        g("s_mov_b64 exec, 1")
        for i in range(4):
            g(f"buffer_store_dwordx4 {vr(V_WB[0]+4*i,4)}, v{V_T}, s[{S_PS}:{S_PS+3}], 0 offen offset:{16*i}")
    g.label("L_end")
    g("s_endpgm")
    g.raw('.section .rodata,"a"')
    g.raw(".p2align 6")
    g.raw(f".amdhsa_kernel {KN}")
    g.raw("  .amdhsa_next_free_vgpr 256")
    g.raw("  .amdhsa_next_free_sgpr 102")
    g.raw("  .amdhsa_accum_offset 256")
    g.raw("  .amdhsa_group_segment_fixed_size 0")
    g.raw("  .amdhsa_kernarg_size 72")
    g.raw("  .amdhsa_user_sgpr_count 2")
    g.raw("  .amdhsa_user_sgpr_kernarg_segment_ptr 1")
    g.raw("  .amdhsa_system_sgpr_workgroup_id_x 1")
    g.raw(".end_amdhsa_kernel")
    return g.text()

if __name__ == "__main__":
    ap = argparse.ArgumentParser()
    ap.add_argument("--lead", type=int, default=6)
    ap.add_argument("--stflags", default="sc1")
    ap.add_argument("--tfl", default="")
    ap.add_argument("--stamp", type=int, default=0)
    ap.add_argument("--codepf", type=int, default=1)
    ap.add_argument("--tail", type=int, default=1)
    ap.add_argument("--pk", type=int, default=1)
    ap.add_argument("--touch", type=int, default=0)
    ap.add_argument("--budget", type=int, default=2)
    ap.add_argument("--ldscost", type=int, default=1)
    ap.add_argument("--fakeline", type=int, default=0)
    ap.add_argument("--fine", type=int, default=0)
    ap.add_argument("--i0", type=int, default=16)
    ap.add_argument("--i1", type=int, default=18)
    ap.add_argument("--i2", type=int, default=21)
    ap.add_argument("--i3", type=int, default=30)
    ap.add_argument("--tbar", type=int, default=18)
    ap.add_argument("--prio", type=int, default=0)
    ap.add_argument("--bn0", type=int, default=40)
    ap.add_argument("--dummy", type=int, default=0)
    ap.add_argument("--otouch", type=int, default=0)
    ap.add_argument("--odelay", type=int, default=0)
    ap.add_argument("--map", default="8x4")
    ap.add_argument("--ctouch", type=int, default=2)
    ap.add_argument("--cwhen", type=int, default=22)
    ap.add_argument("--warm", type=int, default=0)
    ap.add_argument("--h1", type=int, default=3)
    ap.add_argument("--h2", type=int, default=2)
    ap.add_argument("--xfl", default="nt")
    ap.add_argument("--wfl", default="")
    ap.add_argument("--tord", type=int, default=2)
    ap.add_argument("--snake", type=int, default=1)
    ap.add_argument("--bgap", type=int, default=1)
    ap.add_argument("--swp", type=int, default=0)
    ap.add_argument("--lastplain", type=int, default=0)
    ap.add_argument("--xfirst", type=int, default=0)
    ap.add_argument("--ptouch", type=int, default=0)
    ap.add_argument("--bnpro", type=int, default=1)
    ap.add_argument("--cw0", type=int, default=3)
    ap.add_argument("--bnlane", type=int, default=1)
    ap.add_argument("--bntail", type=int, default=1)
    ap.add_argument("--pfto", type=int, default=1)
    ap.add_argument("--rot", type=int, default=0)
    ap.add_argument("--rotsel", default="m")
    ap.add_argument("--rotonly", default="")
    ap.add_argument("--xr", type=int, default=0)
    ap.add_argument("--xrbit", type=int, default=0)
    ap.add_argument("--bal", type=int, default=1)
    ap.add_argument("--early30", type=int, default=1)
    ap.add_argument("--gap", type=int, default=5)
    ap.add_argument("-o", default="-")
    o = ap.parse_args()
    for k in ("stflags", "tfl", "xfl", "wfl"):
        if getattr(o, k): setattr(o, k, " " + getattr(o, k))
    t = gen(o)
    if o.o == "-": sys.stdout.write(t)
    else: open(o.o, "w").write(t)
```

```python
import sys
import hz

KN = "standalone__batchnorm__sampling_kernel"
HEADER = """; Kernarg layout for this problem (72 bytes, ptrs only, base s[0:1]):
; @launch grid=(256,1,1) block=(512,1,1) lds=163840
;
; Waves 0..3 each own 32 output channels: v_mfma_f32_16x16x32_bf16 with A = w^T (ds_read_b64_tr_b16),
; B = x (ds_read_b128); the taps that fall on the zero padding are skipped (88 MFMAs per stage instead of 96).
"""
XSLOT, WBASE, WSLOT, WREG = 32768, 65536, 24576, 6144
L, NXB = 6, 8
MARKS = ((16, 9), (18, 11), (21, 14), (30, 20))
CWHEN, TBAR, GAP, BN0 = 22, 18, 5, 40

V_XD, V_WD, V_TX = 1, 2, 3
V_XA, V_XA2, V_WA, V_OUT, V_T = [6, 7], 1, [8, 9], 11, 12
V_SC, V_SH, V_E, V_XB, V_WB, V_ACC = 16, 24, 32, 48, [80, 104], 128
V_W2 = [40, 44, 72, 76, 2, 12]
S_XS, S_WS, S_OS, S_PS = 8, 12, 16, 20
S_WAVE, S_B0, S_N0, S_MX, S_MW, S_DELTA, S_CNT = 24, 25, 26, 27, 28, 29, 30
S_WO = [None, 33, 34, 35, 36, 37]
S_XO = [None, 56, 57, 58, 31, 38, 39, 32]
S_K, S_T, S_WLIM, S_SO, S_PC = 38, 40, 59, 60, 64

lines = []
def g(s): lines.append("    " + s)
def c(s): lines.append("    ; " + s)
def label(s): lines.append(s + ":")
def vr(b, n): return f"v[{b}:{b+n-1}]"
def acc(sp, bg, d): return V_ACC + ((sp * 2 + bg) * 2 + d) * 4
def wfrag(p, t, d): return V_WB[p] + (t * 2 + d) * 4 if p < 2 else V_W2[t * 2 + d]

lines.append(HEADER + '.amdgcn_target "amdgcn-amd-amdhsa--gfx950"\n.text')
lines.append(f".globl {KN}")
lines.append("; placement only (never executed): keeps the VALU-only end of the kernel inside one 4 KiB page\n.p2align 12\n.fill 640, 4, 0xbf810000")
lines.append(f".p2align 8\n.type {KN},@function")
label(KN)
g("s_cmp_ge_u32 s2, 256")
g("s_cbranch_scc1 L_end")
g("s_load_dwordx4 s[4:7], s[0:1], 0")
g("s_load_dwordx8 s[44:51], s[0:1], 16")
g("s_load_dwordx2 s[52:53], s[0:1], 48")
g(f"v_lshrrev_b32 v{V_T}, 6, v0")
c("wave 4 pulls the code up to the tail into L2, one dword per 128-byte line")
g(f"s_getpc_b64 s[{S_PC}:{S_PC+1}]")
g(f"s_and_b32 s{S_PC}, s{S_PC}, 0xffffff00")
g(f"v_xor_b32 v{V_T+1}, 256, v0")
g(f"v_lshlrev_b32 v{V_T+1}, 7, v{V_T+1}")
g(f"v_cmp_gt_u32 vcc, L_tail-{KN}, v{V_T+1}")
g(f"s_and_saveexec_b64 s[{S_PC+2}:{S_PC+3}], vcc")
g("s_cbranch_execz L_nopf")
g(f"global_load_dword v10, v{V_T+1}, s[{S_PC}:{S_PC+1}]")
label("L_nopf")
g("s_mov_b64 exec, -1")
g(f"v_readfirstlane_b32 s{S_WAVE}, v{V_T}")
g("v_and_b32 v0, 63, v0")
c("tile: m = 8*((id&7)>>1) + (id>>5), n = 4*(id&1) + ((id>>3)&3); byte offsets m*32*16384 and n*256")
g("s_and_b32 s3, s2, 7")
g(f"s_lshr_b32 s{S_T}, s2, 3")
g(f"s_lshr_b32 s{S_B0}, s3, 1")
g(f"s_lshl_b32 s{S_B0}, s{S_B0}, 3")
g(f"s_lshr_b32 s{S_T+1}, s{S_T}, 2")
g(f"s_add_u32 s{S_B0}, s{S_B0}, s{S_T+1}")
g(f"s_and_b32 s{S_N0}, s3, 1")
g(f"s_lshl_b32 s{S_N0}, s{S_N0}, 2")
g(f"s_and_b32 s{S_T+1}, s{S_T}, 3")
g(f"s_add_u32 s{S_N0}, s{S_N0}, s{S_T+1}")
g(f"s_lshl_b32 s{S_B0}, s{S_B0}, 19")
g(f"s_lshl_b32 s{S_N0}, s{S_N0}, 8")
g(f"s_and_b32 s{S_T}, s{S_WAVE}, 3")
g(f"s_cmp_lt_u32 s{S_WAVE}, 4")
g("s_cbranch_scc1 L_consumer")

c("======== loader waves ========")
c("w offset: (8w + (l>>4))*2048 + ((l&15) ^ (4*(l>>4) + 2*(w&1)))*16")
g(f"v_lshrrev_b32 v{V_T}, 4, v0")
g(f"s_and_b32 s{S_T+2}, s{S_T}, 1")
g(f"s_lshl_b32 s{S_T+3}, s{S_T+2}, 1")
g(f"v_lshl_add_u32 v{V_T+1}, v{V_T}, 2, s{S_T+3}")
g(f"v_xor_b32 v{V_T+1}, v{V_T+1}, v0")
g(f"v_and_b32 v{V_T+1}, 15, v{V_T+1}")
g(f"v_lshlrev_b32 v{V_T+1}, 4, v{V_T+1}")
g(f"v_lshl_add_u32 v{V_WD}, v{V_T}, 11, v{V_T+1}")
g(f"s_lshl_b32 s{S_T+1}, s{S_T}, 14")
g(f"v_add_u32 v{V_WD}, s{S_T+1}, v{V_WD}")
c("x offset: (8*(w&1) + (l>>3))*16384 + (w>>1)*2048 + ((l&7) ^ (4*(w&1) + (l>>4)))*16")
g(f"s_lshl_b32 s{S_T+3}, s{S_T+2}, 2")
g(f"v_xor_b32 v{V_T+1}, v{V_T}, v0")
g(f"v_xor_b32 v{V_T+1}, s{S_T+3}, v{V_T+1}")
g(f"v_and_b32 v{V_T+1}, 7, v{V_T+1}")
g(f"v_lshlrev_b32 v{V_T+1}, 4, v{V_T+1}")
g(f"v_lshrrev_b32 v{V_T+2}, 3, v0")
g(f"v_lshl_add_u32 v{V_XD}, v{V_T+2}, 14, v{V_T+1}")
g(f"s_lshr_b32 s{S_T+3}, s{S_T}, 1")
g(f"s_lshl_b32 s{S_T+1}, s{S_T+2}, 17")
g(f"s_lshl_b32 s{S_MX}, s{S_T+3}, 11")
g(f"s_add_u32 s{S_T+1}, s{S_T+1}, s{S_MX}")
g(f"v_add_u32 v{V_XD}, s{S_T+1}, v{V_XD}")
g(f"s_lshl_b32 s{S_MX}, s{S_T+3}, 12")
g(f"s_lshl_b32 s{S_T+1}, s{S_T+2}, 10")
g(f"s_add_u32 s{S_MX}, s{S_MX}, s{S_T+1}")
for j in range(1, 6):
    g(f"s_mov_b32 s{S_WO[j]}, {(j >> 1) * 2097152 + (j & 1) * 8192 - (j % 4) * 1024}")
for i in range(1, 8):
    g(f"s_mov_b32 s{S_XO[i]}, {(i >> 2) * 262144 + (i & 3) * 4096}")
g(f"s_mul_i32 s{S_MW}, s{S_T}, {WREG}")
g(f"s_add_u32 s{S_MW}, s{S_MW}, {WBASE}")
g(f"s_add_u32 s{S_WLIM}, s{S_MW}, {4*WSLOT}")
g(f"s_mov_b32 s{S_XS+3}, 0x20000")
g(f"s_mov_b32 s{S_WS+3}, 0x20000")
g(f"s_sub_u32 s{S_XS+2}, 16777216, s{S_B0}")
g(f"s_sub_u32 s{S_WS+2}, 6291456, s{S_N0}")
g("s_waitcnt lgkmcnt(0)")
g(f"s_add_u32 s{S_WS}, s6, s{S_N0}")
g(f"s_addc_u32 s{S_WS+1}, s7, 0")
g(f"s_add_u32 s{S_XS}, s4, s{S_B0}")
g(f"s_addc_u32 s{S_XS+1}, s5, 0")

def x_chunk():
    for i in range(8):
        off = (i & 3) * 8192 + (i >> 2) * 2048
        g(f"s_add_u32 m0, s{S_MX}, {off}" if off else f"s_mov_b32 m0, s{S_MX}")
        g("s_nop 0")
        g(f"buffer_load_dwordx4 v{V_XD}, s[{S_XS}:{S_XS+3}], {'s%d' % S_XO[i] if i else '0'} offen nt lds")
    g(f"s_add_u32 s{S_XS}, s{S_XS}, 128")
    g(f"s_addc_u32 s{S_XS+1}, s{S_XS+1}, 0")
    g(f"s_sub_u32 s{S_XS+2}, s{S_XS+2}, 128")
    g(f"s_xor_b32 s{S_MX}, s{S_MX}, {XSLOT}")
def w_stage():
    for j in range(6):
        if j == 0: g(f"s_mov_b32 m0, s{S_MW}"); g("s_nop 0")
        if j == 4: g(f"s_add_u32 m0, s{S_MW}, 4096"); g("s_nop 0")
        off = f" offset:{(j % 4) * 1024}" if j % 4 else ""
        g(f"buffer_load_dwordx4 v{V_WD}, s[{S_WS}:{S_WS+3}], {'s%d' % S_WO[j] if j else '0'} offen{off} lds")
    g(f"s_add_u32 s{S_WS}, s{S_WS}, 65536")
    g(f"s_addc_u32 s{S_WS+1}, s{S_WS+1}, 0")
    g(f"s_sub_u32 s{S_WS+2}, s{S_WS+2}, 65536")
    g(f"s_add_u32 s{S_MW}, s{S_MW}, {WSLOT}")
    g(f"s_cmp_eq_u32 s{S_MW}, s{S_WLIM}")
    g(f"s_cselect_b32 s{S_T+1}, {4*WSLOT}, 0")
    g(f"s_sub_u32 s{S_MW}, s{S_MW}, s{S_T+1}")

c("start-up: w0 x0 w1 w2 x1 w3 w4; barriers once (w0, x pieces 0-2), (3-4), (5-7), (w1) have landed")
n0 = len(lines)
w_stage(); x_chunk(); w_stage(); w_stage(); x_chunk(); w_stage()
g(f"s_lshl_b32 s{S_T+1}, s{S_T}, 11")
g(f"s_add_u32 s{S_T+1}, s{S_T+1}, (L_tail-{KN})&0xffffff80")
g(f"v_min_u32 v{V_T}, 15, v0")
g(f"v_lshl_add_u32 v{V_TX}, v{V_T}, 7, s{S_T+1}")
g(f"v_min_u32 v{V_TX}, (L_end-{KN})&0xffffffc0, v{V_TX}")
w_stage()
seg = lines[n0:]; del lines[n0:]
k = 0
for ln in seg:
    lines.append(ln)
    if ln.endswith(" lds"):
        k += 1
        for at, need in MARKS:
            if k == at:
                g(f"s_waitcnt vmcnt({k - need})")
                g("s_barrier")
g(f"s_mov_b32 s{S_CNT}, 0")
label("L_ld_loop")
c("odd barrier: next x chunk and next w stage landed; the x slot just read is free")
g("s_waitcnt vmcnt(12)")
g("s_barrier")
x_chunk()
g(f"s_add_u32 s{S_CNT}, s{S_CNT}, 2")
g(f"s_cmp_ge_u32 s{S_CNT}, 28")
g("s_cbranch_scc1 L_ld_last")
c("even barrier: next w stage landed; two w slots are free")
g("s_waitcnt vmcnt(14)")
g("s_barrier")
w_stage(); w_stage()
c("once, late in the loop: pull the tail's code into L2")
g(f"s_cmp_lg_u32 s{S_CNT}, {CWHEN}")
g("s_cbranch_scc1 L_noct")
g(f"global_load_dword v4, v{V_TX}, s[{S_PC}:{S_PC+1}]")
label("L_noct")
g("s_branch L_ld_loop")
label("L_ld_last")
w_stage()
g("s_waitcnt vmcnt(14)")
g("s_barrier")
g("s_waitcnt vmcnt(0)")
g("s_barrier")
g("s_endpgm")

label("L_consumer")
c("======== MFMA waves ========")
g(f"s_mov_b32 s{S_PS+2}, 2048")
g(f"s_mov_b32 s{S_PS+3}, 0x20000")
g(f"s_mov_b32 s{S_OS+3}, 0x20000")
g(f"v_lshrrev_b32 v{V_T+2}, 4, v0")
g(f"s_lshl_b32 s{S_T+1}, s{S_T}, 6")
g(f"s_add_u32 s{S_T+1}, s{S_T+1}, s{S_N0}")
c("BN parameters, one channel per lane: k = l&7 -> channel 16*(k>>2) + 4*(l>>4) + (k&3)")
g(f"v_lshl_add_u32 v{V_T}, v{V_T+2}, 3, s{S_T+1}")
g(f"v_bfe_u32 v{V_T+1}, v0, 2, 1")
g(f"v_lshl_add_u32 v{V_T}, v{V_T+1}, 5, v{V_T}")
g(f"v_and_b32 v{V_T+1}, 3, v0")
g(f"v_lshl_add_u32 v36, v{V_T+1}, 1, v{V_T}")
c("x read: (l&15)*128 + ((l>>4) ^ ((l&15)>>1))*16, second half of a chunk ^64")
g(f"v_and_b32 v{V_T}, 15, v0")
g(f"v_lshrrev_b32 v{V_T+1}, 1, v{V_T}")
g(f"v_xor_b32 v{V_T+1}, v{V_T+1}, v{V_T+2}")
g(f"v_lshlrev_b32 v{V_T+1}, 4, v{V_T+1}")
g(f"v_lshl_add_u32 v{V_XA[0]}, v{V_T}, 7, v{V_T+1}")
g(f"v_xor_b32 v{V_XA[1]}, 64, v{V_XA[0]}")
c("output offset: (l&15)*16384 + ((l>>4)&1)*32 + (l>>5)*16 + wave*64")
g(f"v_lshlrev_b32 v{V_T}, 14, v{V_T}")
g(f"v_bfe_u32 v{V_T+1}, v0, 4, 1")
g(f"v_lshl_add_u32 v{V_T}, v{V_T+1}, 5, v{V_T}")
g(f"v_lshrrev_b32 v{V_T+1}, 5, v0")
g(f"v_lshl_add_u32 v{V_T}, v{V_T+1}, 4, v{V_T}")
g(f"s_lshl_b32 s{S_T+1}, s{S_T}, 6")
g(f"v_add_u32 v{V_OUT}, s{S_T+1}, v{V_T}")
c("w read: base + q*6144 + r*256 + (wave^r)*64 + (block ^ (q&1))*32 + (l&3)*8, q = l>>4, r = (l>>2)&3")
g(f"v_bfe_u32 v{V_T}, v0, 2, 2")
g(f"v_xor_b32 v{V_T+1}, s{S_T}, v{V_T}")
g(f"v_lshlrev_b32 v{V_T+1}, 6, v{V_T+1}")
g(f"v_lshl_add_u32 v{V_T+1}, v{V_T}, 8, v{V_T+1}")
g(f"v_mul_u32_u24 v{V_T+3}, {WREG}, v{V_T+2}")
g(f"v_add_u32 v{V_T+1}, v{V_T+1}, v{V_T+3}")
g(f"v_and_b32 v{V_T+2}, 1, v{V_T+2}")
g(f"v_lshl_add_u32 v{V_T+1}, v{V_T+2}, 5, v{V_T+1}")
g(f"v_and_b32 v{V_T+2}, 3, v0")
g(f"v_lshl_add_u32 v{V_T+1}, v{V_T+2}, 3, v{V_T+1}")
g(f"v_add_u32 v{V_WA[0]}, {WBASE}, v{V_T+1}")
g(f"v_xor_b32 v{V_WA[1]}, 32, v{V_WA[0]}")
g(f"s_mov_b32 s{S_K}, 0xbfb8aa3b")
g(f"s_mov_b32 s{S_K+1}, 0xbfb8aa3b")
g(f"s_mov_b32 s{S_DELTA}, {2*WSLOT}")
g(f"s_mov_b32 s{S_CNT}, 0")
for i in range(0, 128, 2):
    g(f"v_mov_b64 v[{V_ACC+i}:{V_ACC+i+1}], 0")
g("s_waitcnt lgkmcnt(0)")
g(f"s_add_u32 s{S_T+1}, s{S_B0}, s{S_N0}")
g(f"s_add_u32 s{S_OS}, s52, s{S_T+1}")
g(f"s_addc_u32 s{S_OS+1}, s53, 0")
g(f"s_sub_u32 s{S_OS+2}, 16777216, s{S_T+1}")

bn_ld = [[f"s_mov_b32 s{S_PS}, s{44+2*i}", f"s_mov_b32 s{S_PS+1}, s{45+2*i}",
          f"buffer_load_ushort v{32+i}, v36, s[{S_PS}:{S_PS+3}], 0 offen"] for i in range(4)]
m_, v_, g_, b_ = 32, 33, 34, 35
rnd = [f"v_cvt_pk_bf16_f32 v{v_}, v{v_}, v{v_}", f"v_and_b32 v{v_}, 0xffff0000, v{v_}"]
bn_ops = ["s_waitcnt vmcnt(0)", f"s_mov_b32 s{S_T+1}, 0x37280000"]
bn_ops += [f"v_lshlrev_b32 v{r}, 16, v{r}" for r in (v_, g_, m_, b_)]
bn_ops += [f"v_add_f32 v{v_}, s{S_T+1}, v{v_}"] + rnd + [f"v_sqrt_f32 v{v_}, v{v_}"] + rnd + [f"v_rcp_f32 v{v_}, v{v_}"] + rnd
bn_ops += [f"v_mul_f32 v{v_}, v{v_}, v{g_}"] + rnd + [f"v_fma_f32 v{b_}, -v{m_}, v{v_}, v{b_}",
           f"v_mul_f32 v{v_}, s{S_K}, v{v_}", f"v_mul_f32 v{b_}, s{S_K}, v{b_}", "s_nop 1"]
bn_ops += [f"v_mov_b32_dpp v{V_SC+k}, v{v_} row_newbcast:{k} row_mask:0xf bank_mask:0xf" for k in range(8)]
bn_ops += [f"v_mov_b32_dpp v{V_SH+k}, v{b_} row_newbcast:{k} row_mask:0xf bank_mask:0xf" for k in range(8)]

def xread(addr, f, slot):
    return f"ds_read_b128 {vr(V_XB + slot * 4, 4)}, v{addr} offset:{(f & 7) * 4096 + (f >> 3) * 2048}"
def wread(p, t, d, h, slot):
    return f"ds_read_b64_tr_b16 {vr(wfrag(p, t, d) + 2 * h, 2)}, v{V_WA[d]} offset:{slot * WSLOT + t * 2048 + h * 1024}"
def mf(sp, q, d, p, t, slot, xtag, wst):
    a = acc(sp, q, d)
    return ("m", f"v_mfma_f32_16x16x32_bf16 {vr(a,4)}, {vr(wfrag(p,t,d),4)}, {vr(V_XB + slot * 4,4)}, {vr(a,4)}",
            [xtag, ("w", t, d, 0, wst), ("w", t, d, 1, wst)], (sp, q))
def out_group(p, gam, st):
    sp, q = gam & 7, gam >> 3
    out = []
    for d, ts in ((sp & 1, (0, 1, 2)), (1 - (sp & 1), (2, 1, 0))):
        for t in ts:
            if 0 <= sp + t - 1 <= 7:
                f = q * 8 + sp + t - 1
                out.append(mf(sp, q, d, p, t, f % NXB, ("x", f, st), st))
    return out
worder = [(t, d, h) for (t, d) in ((1, 0), (2, 0), (1, 1), (2, 1), (0, 0), (0, 1)) for h in range(2)]

def stage_stream(p, st, first=False):
    groups = [out_group(p, f, st) for f in range(16)]
    nm = sum(len(x) for x in groups)
    fill = [[] for _ in range(nm)]
    start = [sum(len(x) for x in groups[:f]) for f in range(17)]
    fb = 16 - L
    for f in range(fb):
        fill[start[f]].append(("l", xread(V_XA[p], f + L, (f + L) % NXB), ("x", f + L, st)))
    ib = start[fb + 1] - 1
    fill[ib - 1].append(("wait0",))
    fill[ib].append(("bar",))
    fill[ib + 1].append(("l", xread(V_XA[1 - p], 0, 0), ("x", 0, st + 1)))
    taken = set()
    for f in range(fb + 1, 16):
        i = start[f] + (1 if f == fb + 1 else 0)
        fill[i].append(("l", xread(V_XA[1 - p], f + L - 16, f + L - 16), ("x", f + L - 16, st + 1)))
        taken |= {start[f], i}
    free = [i for i in range(ib + 1, nm) if i not in taken]
    for k, w_ in enumerate(worder):
        fill[free[k]].append(("l", wread(1 - p, *w_, 1 - p), ("w",) + w_ + (st + 1,)))
    fill[start[15 - L] + 1].append(("i", f"v_xor_b32 v{V_XA[p]}, {XSLOT}, v{V_XA[p]}"))
    if p == 1:
        fill[1].append(("i", f"v_add_u32 v{V_WA[0]}, s{S_DELTA}, v{V_WA[0]}"))
        fill[2].append(("i", f"v_add_u32 v{V_WA[1]}, s{S_DELTA}, v{V_WA[1]}"))
        fill[3].append(("i", f"s_sub_u32 s{S_DELTA}, 0, s{S_DELTA}"))
    elif first:
        fill[start[10 - L]].insert(0, ("bar",))
        rd = fill[0].pop(0)
        fill[2] += [("bar",), rd]
        for j, l_ in enumerate(bn_ld):
            fill[BN0 + 6 * j] += [("i", t_) for t_ in l_]
    else:
        fill[nm - 3].append(("i", f"s_add_u32 s{S_CNT}, s{S_CNT}, 2"))
        fill[nm - 2].append(("i", f"s_cmp_lt_u32 s{S_CNT}, 28"))
    items = []
    for i, m in enumerate(m for gr in groups for m in gr):
        items.append(m); items += fill[i]
    return items

class Q:
    def __init__(self): self.seq = []; self.done = -1
    def run(self, items):
        cur = []
        for it in items:
            if it[0] == "m":
                need = max(max(i for i, t_ in enumerate(self.seq) if t_ == key) for key in it[2])
                if need > self.done:
                    cnt = min(len(self.seq) - 1 - need, 14)
                    cur.append(f"s_waitcnt lgkmcnt({cnt})")
                    self.done = len(self.seq) - 1 - cnt
                cur.append(it[1])
            elif it[0] == "l": self.seq.append(it[2]); cur.append(it[1])
            elif it[0] == "wait0": cur.append("s_waitcnt lgkmcnt(0)"); self.done = len(self.seq) - 1
            elif it[0] == "bar": cur.append("s_barrier")
            else: cur.append(it[1])
        return cur

q = Q()
wi = lambda ws: [("l", wread(0, *w_, 0), ("w",) + w_ + (0,)) for w_ in ws]
xi = lambda fs: [("l", xread(V_XA[0], f, f), ("x", f, 0)) for f in fs]
init = q.run(wi(worder[:4]) + xi(range(2)) + wi(worder[4:]) + xi(range(2, L)))
stage0 = q.run(stage_stream(0, 0, first=True))
body = q.run(stage_stream(1, 1)) + q.run(stage_stream(0, 2))
assert body == q.run(stage_stream(1, 3)) + q.run(stage_stream(0, 4))

def unit_ops(sp, bg, ui, pk):
    A = [acc(sp, bg, d) + j for d in range(2) for j in range(4)]
    E, P, so = V_E, A[0], S_SO + ui % 4
    if pk:
        aff = [(f"v_pk_fma_f32 {vr(A[i],2)}, {vr(A[i],2)}, {vr(V_SC+i,2)}, {vr(V_SH+i,2)}", 1) for i in range(0, 8, 2)]
        den = [(f"v_pk_fma_f32 {vr(E+i,2)}, {vr(E+i,2)}, s[{S_K}:{S_K+1}], s[{S_K}:{S_K+1}]", 1) for i in range(0, 8, 2)]
        mul = [(f"v_pk_mul_f32 {vr(A[i],2)}, {vr(A[i],2)}, {vr(E+i,2)}", 1) for i in range(0, 8, 2)]
    else:
        aff = [(f"v_fma_f32 v{A[i]}, v{A[i]}, v{V_SC+i}, v{V_SH+i}", 1) for i in range(8)]
        den = [(f"v_fma_f32 v{E+i}, v{E+i}, s{S_K}, s{S_K}", 1) for i in range(8)]
        mul = [(f"v_mul_f32 v{A[i]}, v{A[i]}, v{E+i}", 1) for i in range(8)]
    return (aff + [(f"v_exp_f32 v{E+i}, v{A[i]}", 2) for i in range(8)] + den +
            [(f"v_rcp_f32 v{E+i}, v{E+i}", 2) for i in range(8)] + mul +
            [(f"v_cvt_pk_bf16_f32 v{P+i}, v{A[2*i]}, v{A[2*i+1]}", 1) for i in range(4)] +
            [(f"s_mov_b32 s{so}, {(bg * 128 + sp) * 2048}", 0),
             (f"v_permlane16_swap_b32 v{P}, v{P+2}", 1), (f"v_permlane16_swap_b32 v{P+1}, v{P+3}", 1),
             (f"buffer_store_dwordx4 {vr(P,4)}, v{V_OUT}, s[{S_OS}:{S_OS+3}], s{so} offen sc1", 1)])

st0 = 5
wset, xaddr = [1, 0, 2], [V_XA[1], V_XA[0], V_XA2]
order = [((0,), f) for f in range(6)] + [((1, 2), f) for f in range(6)] + [((0, 1, 2), f) for f in range(6, 16)]
slot = {(0, f): f for f in range(6)}
freeat = {f: f for f in range(6)}
reads = []
for i, (ks, f) in enumerate(order):
    for k in ks:
        if (k, f) in slot: continue
        sl = min(freeat, key=lambda z: freeat[z])
        assert freeat[sl] < i
        reads.append((freeat[sl] + 1, k, f, sl))
        slot[(k, f)] = sl; freeat[sl] = i
groups = [[mf((f & 7) - t + 1, f >> 3, d, wset[k], t, slot[(k, f)], ("x", f, st0 + k), st0 + k)
           for t in (2, 1, 0) if 0 <= (f & 7) - t + 1 <= 7 for d in range(2) for k in ks] for ks, f in order]
flat = [m for gr in groups for m in gr]
nm = len(flat)
start = [sum(len(x) for x in groups[:i]) for i in range(len(order) + 1)]
fill = [[] for _ in range(nm)]
fill[0] += [("i", f"v_xor_b32 v{V_XA2}, {XSLOT}, v{V_XA[1]}"), ("i", f"v_add_u32 v{V_WA[0]}, s{S_DELTA}, v{V_WA[0]}")]
fill[1].append(("i", f"v_add_u32 v{V_WA[1]}, s{S_DELTA}, v{V_WA[1]}"))
fill[TBAR].append(("bar",))
for gi, k, f, sl in reads:
    i = max(start[gi], TBAR + 1)
    while any(it[0] == "l" for it in fill[i]): i += 1
    fill[i].append(("l", xread(xaddr[k], f, sl), ("x", f, st0 + k)))
tw = [(t, d, h) for (t, d) in ((1, 0), (1, 1), (0, 0), (0, 1), (2, 0), (2, 1)) for h in range(2)]
for lo, p, sl, k in ((2, 0, 0, 1), (TBAR + 1, 2, 1, 2)):
    free = [i for i in range(lo, nm) if not fill[i]]
    for j, w_ in enumerate(tw):
        fill[free[j]].append(("l", wread(p, *w_, sl), ("w",) + w_ + (st0 + k,)))
ops = list(bn_ops); i = 3
while ops:
    while ops:
        t_ = ops.pop(0); fill[i].append(("i", t_))
        if not t_.startswith("s_"): break
    i += 1
bn_end = i
last = {m[3]: i for i, m in enumerate(flat)}
units = sorted(last, key=lambda u: last[u])
assert bn_end <= last[units[0]] + GAP
queue = []; nstart = 0
for i in range(nm):
    budget = 2 - sum(1 for it in fill[i] if it[0] == "l")
    while budget > 0:
        if not queue:
            if nstart == 16 or last[units[nstart]] + GAP > i: break
            queue = unit_ops(*units[nstart], nstart, False); nstart += 1
        txt, cost = queue[0]
        if cost > budget and budget < 2: break
        fill[i].append(("i", txt)); queue.pop(0); budget -= cost
items = []
for i, m in enumerate(flat):
    items.append(m); items += fill[i]
fin = q.run(items) + [t for t, _ in queue]
for j in range(nstart, 16):
    fin += [t for t, _ in unit_ops(*units[j], j, True)]
padded, _ = hz.pad(body[-24:] + fin)
assert padded[:24] == body[-24:] and hz.pad(stage0)[0] == stage0

g("s_barrier")
for s_ in init: g(s_)
c("stage 0")
for s_ in stage0: g(s_)
lines.append(".p2align 6")
label("L_loop")
c("stages 1..28, two per trip")
for s_ in body: g(s_)
g("s_cbranch_scc1 L_loop")
label("L_tail")
c("stages 29..31 with the epilogue underneath, then the remaining epilogue")
for s_ in padded[24:]: g(s_)
label("L_end")
g("s_endpgm")
lines.append(f""".section .rodata,"a"
.p2align 6
.amdhsa_kernel {KN}
  .amdhsa_next_free_vgpr 256
  .amdhsa_next_free_sgpr 72
  .amdhsa_accum_offset 256
  .amdhsa_group_segment_fixed_size 0
  .amdhsa_kernarg_size 72
  .amdhsa_user_sgpr_count 2
  .amdhsa_user_sgpr_kernarg_segment_ptr 1
  .amdhsa_system_sgpr_workgroup_id_x 1
.end_amdhsa_kernel""")
open(sys.argv[1] if len(sys.argv) > 1 else "/dev/stdout", "w").write("\n".join(lines) + "\n")
```
